```python
import torch

def _softmax(x, axis=-1):
    return torch.softmax(x, dim=axis)
def _gelu(x):
    return torch.nn.functional.gelu(x, approximate="tanh")
def _silu(x):
    return torch.nn.functional.silu(x)
def _sigmoid(x):
    return torch.sigmoid(x)
def _layernorm(x, axis=-1, eps=1e-5):
    m = x.mean(dim=axis, keepdim=True)
    v = x.var(dim=axis, keepdim=True, unbiased=False)
    return (x - m) / torch.sqrt(v + eps)
def _scatter_add(tgt, idx, src, axis=0):
    return tgt.clone().index_add_(axis, idx, src)
def _segment_sum(src, seg, n):
    out = torch.zeros((n,) + src.shape[1:], dtype=src.dtype)
    return out.index_add_(0, seg, src)
def _pad(x, pw):
    flat = tuple(v for pair in reversed(pw) for v in pair)
    return torch.nn.functional.pad(x, flat)

kernel_name = 'parallel_sum__mha_block_cached__geglu_ffn__decode'

def setup_inputs():

    _w = (lambda a: (lambda t: t.to(torch.bfloat16) if t.is_floating_point() else t)(torch.as_tensor(a)))
    def _A_setup():
        B, Sq, D = 2, 1, 512
        H, Sk, Dh = 32, 4096, 128
        return {
            "x": _w((lambda *s: torch.randn(*s, dtype=torch.bfloat16) * 0.05)(B, Sq, D)),
            "k_cache": _w((lambda *s: torch.randn(*s, dtype=torch.bfloat16) * 3.2)(B, H, Sk, Dh)),
            "v_cache": _w((lambda *s: torch.randn(*s, dtype=torch.bfloat16) * 1.6)(B, H, Sk, Dh)),
            "wq": _w((lambda *s: torch.randn(*s, dtype=torch.bfloat16) * 3.2)(D, H * Dh) * (D ** -0.5)),
            "wo": _w((lambda *s: torch.randn(*s, dtype=torch.bfloat16) * 1.6)(H * Dh, D) * ((H * Dh) ** -0.5)),
        }
    _A_in = _A_setup()

    def _B_setup():
        B, S, D, F = 2, 1, 512, 1376
        return {
            "x": _w((lambda *s: torch.randn(*s, dtype=torch.bfloat16) * 0.05)(B, S, D)),
            "w_gate": _w((lambda *s: torch.randn(*s, dtype=torch.bfloat16) * 0.05)(D, F)),
            "w_up": _w((lambda *s: torch.randn(*s, dtype=torch.bfloat16) * 0.05)(D, F)),
            "w_down": _w((lambda *s: torch.randn(*s, dtype=torch.bfloat16) * 0.05)(F, D)),
        }
    _B_in = _B_setup()

    return {
        "A_x": _A_in["x"],
        "A_k_cache": _A_in["k_cache"],
        "A_v_cache": _A_in["v_cache"],
        "A_wq": _A_in["wq"],
        "A_wo": _A_in["wo"],
        "B_x": _B_in["x"],
        "B_w_gate": _B_in["w_gate"],
        "B_w_up": _B_in["w_up"],
        "B_w_down": _B_in["w_down"],
    }

def reference(A_x, A_k_cache, A_v_cache, A_wq, A_wo, B_x, B_w_gate, B_w_up, B_w_down):
    def _A_ref(x, k_cache, v_cache, wq, wo):
        B, Sq, D = x.shape
        H, Dh = 32, 128
        q = (lambda x, *d: x.permute(*d))((x @ wq).reshape(B, Sq, H, Dh), 0, 2, 1, 3)
        scores = torch.einsum("bhqd,bhkd->bhqk", q, k_cache) * (Dh ** -0.5)
        p = _softmax(scores, axis=-1)
        o = torch.einsum("bhqk,bhkd->bhqd", p, v_cache)
        return (lambda x, *d: x.permute(*d))(o, 0, 2, 1, 3).reshape(B, Sq, H * Dh) @ wo

    def _B_ref(x, w_gate, w_up, w_down):
        return (_gelu(x @ w_gate) * (x @ w_up)) @ w_down

    x = A_x
    xn = _layernorm(x, axis=-1)
    return x + _A_ref(xn, A_k_cache, A_v_cache, A_wq, A_wo) + _B_ref(xn, B_w_gate, B_w_up, B_w_down)
```

```python
import re

def _regs(tok):
    tok = tok.strip()
    tok = re.sub(r"^(-|abs\(|neg\()+", "", tok).rstrip(")")
    tok = tok.strip("|")
    m = re.fullmatch(r"([vsa])\[(\d+):(\d+)\]", tok)
    if m:
        return [(m.group(1), i) for i in range(int(m.group(2)), int(m.group(3)) + 1)]
    m = re.fullmatch(r"([vsa])(\d+)", tok)
    if m:
        return [(m.group(1), int(m.group(2)))]
    if tok in ("vcc", "vcc_lo", "vcc_hi"):
        return [("s", 106), ("s", 107)]
    if tok in ("exec", "exec_lo", "exec_hi"):
        return [("s", 126), ("s", 127)]
    if tok == "m0":
        return [("s", 124)]
    return []

TRANS = ("v_exp_f32", "v_log_f32", "v_rcp_f32", "v_rsq_f32", "v_sqrt_f32", "v_sin_f32", "v_cos_f32", "v_rcp_iflag_f32")

class Asm:
    def __init__(self):
        self.lines = []
        self.t = 0
        self.wr = {}
        self.mfma_c_rd = {}
        self.store_rd = {}
        self.vm = []
        self.vm_done = set()
        self.maxvm = 0
        self.nops = 0

    def raw(self, s):
        self.lines.append(s)

    def comment(self, s):
        self.lines.append("  ; " + s)

    def label(self, name):
        self.lines.append(name + ":")

    def flush_hazards(self):
        self._nop(18)

    def _nop(self, n):
        while n > 0:
            k = min(n, 16)
            self.lines.append(f"  s_nop {k-1}")
            self.t += k
            self.nops += k
            n -= k

    def I(self, text, tag=None):
        text = text.strip()
        mn, _, rest = text.partition(" ")
        ops = []
        depth = 0; cur = ""
        for ch in rest:
            if ch == "[": depth += 1
            if ch == "]": depth -= 1
            if ch == "," and depth == 0:
                ops.append(cur.strip()); cur = ""
            else:
                cur += ch
        if cur.strip():
            ops.append(cur.strip())
        mods = ""
        if ops:
            last = ops[-1].split()
            if len(last) > 1:
                ops[-1] = last[0]; mods = " ".join(last[1:])
        R = [_regs(o) for o in ops]
        reads, writes = [], []
        kind = None
        is_dpp = ("_dpp" in mn) or ("row_" in mods) or ("quad_perm" in mods) or ("wave_" in mods)
        need = 0
        def dist(reg):
            w = self.wr.get(reg)
            return (w, (self.t - w[0]) if w else 10**9)
        if mn.startswith("v_mfma"):
            passes = 8 if "32x32" in mn else 4
            kind = f"mfma{passes}"
            writes = R[0]; A, B, C = R[1], R[2], R[3]
            for r in A + B + C:
                w, d = dist(r)
                if w and w[1] in ("valu", "trans"):
                    need = max(need, 2 - d)
            for r in A + B:
                w, d = dist(r)
                if w and w[1].startswith("mfma"):
                    need = max(need, (8 if w[1] == "mfma4" else 12) - d)
            for r in C:
                w, d = dist(r)
                if w and w[1].startswith("mfma"):
                    if not (w[2] == tuple(C) and w[1] == kind):
                        need = max(need, (6 if w[1] == "mfma4" else 10) - d)
            for r in writes:
                w, d = dist(r)
                if w and w[1].startswith("mfma") and not (w[2] == tuple(writes)):
                    need = max(need, (8 if w[1] == "mfma4" else 12) - d)
            w, d = dist(("s", 126))
            if w and w[1] == "valu": need = max(need, 4 - d)
            reads = A + B + C
        elif mn.startswith("v_"):
            kind = "trans" if any(mn.startswith(t) for t in TRANS) else "valu"
            if mn.startswith("v_permlane") and "swap" in mn:
                writes = R[0] + R[1]; reads = R[0] + R[1]
                for r in reads:
                    w, d = dist(r)
                    if w and w[1] in ("valu", "trans"): need = max(need, 2 - d)
            elif mn.startswith("v_cmp"):
                writes = R[0]; reads = sum(R[1:], [])
            elif mn.startswith("v_readlane") or mn.startswith("v_readfirstlane"):
                writes = R[0]; reads = sum(R[1:], [])
                for r in R[1]:
                    w, d = dist(r)
                    if w and w[1] in ("valu", "trans"): need = max(need, 1 - d)
                if len(R) > 2:
                    for r in R[2]:
                        w, d = dist(r)
                        if w and w[1] in ("valu", "trans"): need = max(need, 4 - d)
            else:
                writes = R[0]; reads = sum(R[1:], [])
                if mn.startswith("v_fmac") or mn.startswith("v_dot2c") or is_dpp:
                    reads = reads + R[0]
                if mn.startswith("v_cndmask") and len(ops) == 3:
                    reads = reads + [("s", 106), ("s", 107)]
                if "_co_" in mn:
                    raise Exception("avoid carry ops in asmlib")
            for r in reads:
                w, d = dist(r)
                if not w: continue
                if r[0] == "s" and w[1] in ("valu", "trans"):
                    need = max(need, 2 - d)
                if w[1] == "trans" and kind != "trans":
                    need = max(need, 1 - d)
                if w[1].startswith("mfma"):
                    need = max(need, (8 if w[1] == "mfma4" else 12) - d)
            if is_dpp:
                for r in R[1]:
                    w, d = dist(r)
                    if w and w[1] in ("valu", "trans"): need = max(need, 2 - d)
            for r in writes:
                w, d = dist(r)
                if w and w[1].startswith("mfma"):
                    need = max(need, (8 if w[1] == "mfma4" else 12) - d)
                c = self.mfma_c_rd.get(r)
                if c: need = max(need, (3 if c[1] == 4 else 7) - (self.t - c[0]))
                sr = self.store_rd.get(r)
                if sr is not None: need = max(need, 2 - (self.t - sr))
        elif mn.startswith("buffer_") or mn.startswith("global_") or mn.startswith("ds_"):
            kind = "mem"
            is_load = ("load" in mn) or mn.startswith("ds_read") or mn.startswith("ds_bpermute") or mn.startswith("ds_swizzle")
            if is_load:
                writes = R[0]; reads = sum(R[1:], [])
            else:
                reads = sum(R, [])
                if "atomic" in mn and "sc0" in mods: writes = R[0]
            for r in reads:
                w, d = dist(r)
                if not w: continue
                if r[0] == "s" and w[1] in ("valu", "trans"): need = max(need, 5 - d)
                if w[1].startswith("mfma"): need = max(need, (8 if w[1] == "mfma4" else 12) - d)
            for r in writes:
                w, d = dist(r)
                if w and w[1].startswith("mfma"): need = max(need, (8 if w[1] == "mfma4" else 12) - d)
                sr = self.store_rd.get(r)
                if sr is not None: need = max(need, 1 - (self.t - sr))
        elif mn.startswith("s_"):
            kind = "salu"
            if mn in ("s_nop",):
                n = int(ops[0], 0) + 1
                self.lines.append("  " + text); self.t += n
                return
            if mn.startswith("s_cmp") or mn.startswith("s_cbranch") or mn in ("s_branch", "s_barrier", "s_waitcnt", "s_endpgm", "s_sleep", "s_setprio", "s_bitcmp1_b32", "s_bitcmp0_b32"):
                reads = sum(R, [])
            else:
                writes = R[0] if R else []
                reads = sum(R[1:], [])
                if "saveexec" in mn: writes = writes + [("s", 126), ("s", 127)]
            for r in reads:
                w, d = dist(r)
                if w and w[1] in ("valu", "trans"): need = max(need, 1 - d)
            if mn.startswith("s_cbranch_vcc"):
                w, d = dist(("s", 106))
                if w and w[1] in ("valu", "trans"): need = max(need, 5 - d)
        else:
            raise Exception("unknown instr " + text)
        if need > 0:
            self._nop(need)
        self.lines.append("  " + text)
        now = self.t
        for r in writes:
            if kind.startswith("mfma"):
                self.wr[r] = (now + 1, kind, tuple(writes))
            elif kind == "mem":
                self.wr.pop(r, None)
            else:
                self.wr[r] = (now + 1, kind, None)
        if kind.startswith("mfma"):
            for r in R[3]:
                self.mfma_c_rd[r] = (now + 1, int(kind[4:]))
        if kind == "mem" and not (("load" in mn) or mn.startswith("ds_")) and ("x3" in mn or "x4" in mn):
            for r in R[0]:
                self.store_rd[r] = now + 1
        self.t += 1
        if mn.startswith("buffer_") or mn.startswith("global_"):
            self.vm.append(tag if tag is not None else f"_anon{len(self.lines)}")
            self.maxvm = max(self.maxvm, len(self.vm))
            assert len(self.vm) <= 63, "too many outstanding vmem"

    def wait_vm(self, tag):
        if tag in self.vm_done:
            return
        assert tag in self.vm, tag
        i = self.vm.index(tag)
        n = len(self.vm) - 1 - i
        self.I(f"s_waitcnt vmcnt({n})")
        for x in self.vm[: i + 1]:
            self.vm_done.add(x)
        self.vm = self.vm[i + 1:]

    def wait_vm_all(self):
        self.I("s_waitcnt vmcnt(0)")
        for x in self.vm: self.vm_done.add(x)
        self.vm = []

    def wait_lgkm(self, n=0):
        self.I(f"s_waitcnt lgkmcnt({n})")

    def text(self):
        return "\n".join(self.lines) + "\n"
```

```python
import sys, struct
from asmlib import Asm
NAME = "parallel_sum__mha_block_cached__geglu_ffn__decode"
HEADER = open("cdna_kernels/" + NAME + ".s.ref").read().split("; Override launch")[0]

def f32(x):
    return "0x%08x" % struct.unpack("<I", struct.pack("<f", x))[0]

WS_Y = 0
WS_ST = 0x80000
WS_STAMP = 0x8000000
L_QP, L_OP, L_FP, L_QS = 0, 4096, 8192, 9216
LDS_BYTES = 9728
LOG2E = 1.4426950408889634
SCALE = 128 ** -0.5

def gen(two_kernel=False, kv_flags="nt", w_flags="", interleave=True, W=16, kq_lead=1, kq_ratio=1,
        rot=True, stamps=False, poll_sleep=1, cnt_at=4, stats_at=12, ffn_mode=0):
    a = Asm()
    I = a.I
    nstamp = [0]
    def stamp():
        if stamps:
            k = nstamp[0]; nstamp[0] += 1
            I(f"s_memrealtime s[{84+2*k}:{85+2*k}]")
    def rne(d, s):
        I(f"v_cvt_pk_bf16_f32 {d}, {s}, {s}")
        I(f"v_and_b32 {d}, 0xffff0000, {d}")
    def wave_red(op, regs, tmps, first=8, steps=(8, 4, 2, 1)):
        for st in steps:
            for r in regs:
                I(f"{op}_dpp {r}, {r}, {r} row_ror:{st} row_mask:0xf bank_mask:0xf")
        for sw in ("v_permlane16_swap_b32", "v_permlane32_swap_b32"):
            for r, t in zip(regs, tmps):
                I(f"v_mov_b32 {t}, {r}")
            for r, t in zip(regs, tmps):
                I(f"{sw} {r}, {t}")
            for r, t in zip(regs, tmps):
                I(f"{op} {r}, {r}, {t}")
    def srd(base, lo, hi, off, size):
        if off is None:
            I(f"s_mov_b32 s{base}, s{lo}"); I(f"s_mov_b32 s{base+1}, s{hi}")
        else:
            I(f"s_add_u32 s{base}, s{lo}, {off}"); I(f"s_addc_u32 s{base+1}, s{hi}, 0")
        I(f"s_mov_b32 s{base+2}, {size}")
        I(f"s_mov_b32 s{base+3}, 0x20000")
    X, K, V, WQ, WO, WG, WU, WD, WS, DBG, OUT = [f"s[{40+4*i}:{43+4*i}]" for i in range(11)]
    KB = lambda t: f"v[{128+4*t}:{131+4*t}]"
    QW = lambda t: f"v[{64+4*t}:{67+4*t}]"

    a.raw(f"{NAME}_kernel:")
    stamp()
    I("s_cmp_ge_u32 s2, 256")
    I("s_cbranch_scc1 L_end")
    I("s_load_dwordx16 s[16:31], s[0:1], 0")
    I("s_load_dwordx8 s[32:39], s[0:1], 64")
    I("v_lshrrev_b32 v1, 6, v0")
    I("v_and_b32 v0, 63, v0")
    I("v_readfirstlane_b32 s10, v1")
    I("s_and_b32 s3, s2, 7")
    I("s_lshr_b32 s4, s2, 3")
    I("s_and_b32 s5, s4, 3")
    I("s_lshl_b32 s6, s3, 2")
    I("s_add_u32 s6, s6, s5")
    I("s_lshr_b32 s7, s4, 2")
    I("s_lshr_b32 s8, s7, 2")
    I("s_and_b32 s9, s7, 3")
    I("s_lshl_b32 s11, s8, 5")
    I("s_add_u32 s11, s11, s6")
    I("s_lshl_b32 s12, s11, 2")
    I("s_add_u32 s12, s12, s9")
    if rot:
        I("s_lshl_b32 s13, s7, 1")
    else:
        I("s_mov_b32 s13, 0")
    I("s_lshl_b32 s14, s9, 2")
    I("s_add_u32 s14, s14, s5")
    I("s_mul_i32 s15, s3, 11")
    I("s_add_u32 s15, s15, s14")
    I("v_and_b32 v8, 15, v0")
    I("v_lshrrev_b32 v9, 4, v0")
    I("v_and_b32 v1, 12, v0"); I("v_lshlrev_b32 v1, 6, v1")
    I("v_lshl_add_u32 v1, v9, 6, v1")
    I("v_and_b32 v10, 3, v0"); I("v_lshl_add_u32 v1, v10, 4, v1")
    I("v_lshlrev_b32 v2, 4, v0")
    wsh = 10 if interleave else 15
    I(f"s_lshl_b32 s96, s10, {wsh}")
    I("v_add_u32 v1, s96, v1")
    I("v_add_u32 v2, s96, v2")
    tstride = 8192 if interleave else 1024
    I("v_add_u32 v10, s13, v8"); I("v_and_b32 v10, 15, v10")
    I("s_lshl_b32 s97, s10, 6")
    I("v_lshl_add_u32 v11, v9, 4, v10")
    I("v_add_u32 v12, s97, v11")
    I("v_lshlrev_b32 v13, 1, v12")
    I("v_lshlrev_b32 v3, 17, v9")
    I("v_lshl_add_u32 v3, v8, 4, v3")
    I("s_lshl_b32 s98, s10, 19")
    I("v_add_u32 v3, s98, v3")
    I("v_mov_b32 v16, -1"); I("v_mov_b32 v17, -1")
    I("s_lshl_b32 s98, s12, 11")
    I("s_lshl_b32 s99, s10, 8")
    I("s_add_u32 s98, s98, s99")
    I("v_lshl_add_u32 v7, v0, 2, s98")
    I("s_lshl_b32 s99, s12, 6")
    I("s_lshl_b32 s100, s10, 3")
    I("s_add_u32 s99, s99, s100")
    I(f"s_add_u32 s99, s99, {WS_ST}")
    a.wait_lgkm(0)
    I("s_lshl_b32 s100, s8, 10"); srd(40, 16, 17, "s100", 1024)
    I("s_lshl_b32 s100, s12, 18"); srd(44, 18, 19, "s100", 262144); srd(48, 20, 21, "s100", 262144)
    srd(72, 38, 39, None, 0x10000000)
    I("v_lshlrev_b32 v14, 4, v0")
    I("s_cmp_lg_u32 s10, 0")
    I("s_cbranch_scc1 L_noclr")
    I("v_mov_b32 v18, -1"); I("v_mov_b32 v19, -1")
    I("v_add_u32 v15, s98, v14")
    I("v_add_u32 v6, s99, v14")
    a.raw(f"  buffer_store_dwordx4 v[16:19], v15, {WS}, 0 offen sc1")
    a.raw(f"  buffer_store_dwordx4 v[16:19], v15, {WS}, 0 offen offset:1024 sc1")
    I("s_mov_b64 exec, 15")
    a.raw(f"  buffer_store_dwordx4 v[16:19], v6, {WS}, 0 offen sc1")
    I("s_mov_b64 exec, -1")
    a.raw("L_noclr:")
    I(f"buffer_load_dwordx4 v[56:59], v14, {X}, 0 offen", "xrow")
    I(f"buffer_load_ushort v60, v13, {X}, 0 offen", "xe")
    kq = []
    def issueK(t):
        off = t * tstride; imm = off % 4096; so = off - imm
        if so: I(f"s_mov_b32 s101, {so}")
        I(f"buffer_load_dwordx4 {KB(t)}, v1, {K}, {'s101' if so else '0'} offen offset:{imm} {kv_flags}", f"K{t}")
    def issueV(t):
        off = t * tstride; imm = off % 4096; so = off - imm
        if so: I(f"s_mov_b32 s101, {so}")
        I(f"buffer_load_dwordx4 {KB(t)}, v2, {V}, {'s101' if so else '0'} offen offset:{imm} {kv_flags}", f"V{t}")
    nk = 0
    for _ in range(kq_lead):
        issueK(nk); nk += 1
    I("s_lshl_b32 s100, s6, 8"); I("s_sub_u32 s101, 0x400000, s100"); srd(52, 22, 23, "s100", "s101")
    I("s_cmp_lt_u32 s14, 11"); I("s_cselect_b32 s100, 1409024, 0")
    I("s_cmp_lt_u32 s15, 86"); I("s_cselect_b32 s100, s100, 0")
    srd(60, 28, 29, None, "s100"); srd(64, 30, 31, None, "s100"); srd(68, 32, 33, None, "s100")
    I("v_and_b32 v5, 1, v9"); I("v_lshl_add_u32 v5, v5, 4, v10"); I("v_add_u32 v5, s97, v5")
    I("v_mul_u32_u24 v5, 2752, v5")
    I("v_lshrrev_b32 v15, 5, v0"); I("v_lshl_add_u32 v5, v15, 4, v5")
    I("s_lshl_b32 s100, s15, 5"); I("v_add_u32 v5, s100, v5")
    I("s_mov_b32 s100, 88064")
    I(f"buffer_load_dwordx4 v[40:43], v5, {WG}, 0 offen {w_flags}", "G0")
    I(f"buffer_load_dwordx4 v[44:47], v5, {WG}, s100 offen {w_flags}", "G1")
    I(f"buffer_load_dwordx4 v[48:51], v5, {WU}, 0 offen {w_flags}", "U0")
    I(f"buffer_load_dwordx4 v[52:55], v5, {WU}, s100 offen {w_flags}", "U1")
    I("s_lshl_b32 s96, s13, 13")
    for t in range(16):
        I(f"s_add_u32 s100, s96, {t*8192}"); I("s_and_b32 s100, s100, 0x1e000")
        I(f"buffer_load_dwordx4 {QW(t)}, v3, {WQ}, s100 offen {w_flags}", f"Q{t}")
        for _ in range(kq_ratio):
            if nk < 32:
                issueK(nk); nk += 1
    while nk < 32:
        issueK(nk); nk += 1
    I("s_lshl_b32 s100, s6, 17"); srd(56, 24, 25, "s100", 131072)
    srd(76, 36, 37, None, 256); srd(80, 34, 35, None, 2048)
    I("v_and_b32 v4, 1, v8"); I("v_lshl_add_u32 v4, v9, 5, v4"); I("v_lshlrev_b32 v4, 10, v4")
    I("v_lshrrev_b32 v15, 1, v8"); I("v_lshl_add_u32 v4, v15, 4, v4")
    I("s_lshl_b32 s100, s10, 7"); I("v_add_u32 v4, s100, v4")
    I("v_and_b32 v5, 1, v8"); I("v_lshl_add_u32 v5, v9, 2, v5"); I("v_lshlrev_b32 v5, 10, v5")
    I("v_lshl_add_u32 v5, v15, 4, v5")
    I("s_lshl_b32 s101, s15, 14"); I("s_add_u32 s100, s100, s101"); I("v_add_u32 v5, s100, v5")
    I("v_lshlrev_b32 v3, 3, v11")
    I("v_and_b32 v6, 7, v8"); I("v_lshlrev_b32 v6, 2, v6"); I("v_lshl_add_u32 v6, v9, 7, v6")
    I("s_lshl_b32 s100, s10, 9"); I("v_add_u32 v6, s100, v6")
    I("v_and_b32 v32, 1, v8"); I("v_lshlrev_b32 v32, 4, v32")
    I("v_mov_b32 v33, 0xffff"); I("v_lshlrev_b32 v33, v32, v33")
    I("v_lshrrev_b32 v34, 3, v8"); I("v_mul_u32_u24 v34, 0x202, v34"); I("v_add_u32 v34, 0x100, v34")
    I("v_xor_b32 v34, 0xc0c, v34"); I("v_lshlrev_b32 v34, v32, v34")
    I("v_bfe_u32 v35, v8, 1, 2")
    I("v_mov_b32 v36, v9")
    I("v_mov_b32 v37, v8")
    for d in range(4):
        I(f"v_cmp_eq_u32 vcc, {d}, v35")
        I(f"v_cndmask_b32 v{8+d}, 0, v33, vcc")
    for d in range(4):
        I(f"v_and_b32 v{12+d}, v34, v{8+d}")
        I(f"v_xor_b32 v{12+d}, 0x0c0c0c0c, v{12+d}")
    I("v_and_b32 v61, 3, v37"); I("v_lshl_add_u32 v61, v36, 2, v61"); I("v_lshlrev_b32 v61, 4, v61")
    I("v_and_b32 v62, 1, v37"); I("v_lshlrev_b32 v62, 3, v62"); I("v_lshl_add_u32 v62, v36, 4, v62")
    I("v_lshrrev_b32 v63, 5, v0"); I("v_lshlrev_b32 v63, 5, v63"); I("s_lshl_b32 s100, s10, 7"); I("v_add_u32 v63, s100, v63")

    a.wait_vm("xe")
    I("s_cmp_lg_u32 s10, 0")
    I("s_cbranch_scc1 L_nosig")
    I("v_mov_b32 v24, 1")
    I("s_mov_b64 exec, 1")
    a.raw(f"  buffer_atomic_add v24, off, {DBG}, 0 sc1")
    I("s_mov_b64 exec, -1")
    a.raw("L_nosig:")
    for k in range(4):
        I(f"v_lshlrev_b32 v{16+2*k}, 16, v{56+k}")
        I(f"v_and_b32 v{17+2*k}, 0xffff0000, v{56+k}")
    I("v_add_f32 v24, v16, v17"); I("v_add_f32 v25, v18, v19"); I("v_add_f32 v26, v20, v21"); I("v_add_f32 v27, v22, v23")
    I("v_add_f32 v24, v24, v25"); I("v_add_f32 v26, v26, v27"); I("v_add_f32 v24, v24, v26")
    wave_red("v_add_f32", ["v24"], ["v25"])
    I(f"v_mul_f32 v24, {f32(1/512)}, v24")
    for k in range(8):
        I(f"v_sub_f32 v{16+k}, v{16+k}, v24")
    I("v_mul_f32 v26, v16, v16")
    for k in range(1, 8):
        I(f"v_fmac_f32 v26, v{16+k}, v{16+k}")
    wave_red("v_add_f32", ["v26"], ["v25"])
    I(f"v_mul_f32 v26, {f32(1/512)}, v26")
    rne("v24", "v24"); rne("v26", "v26")
    I(f"v_add_f32 v26, {f32(1e-5)}, v26"); rne("v26", "v26")
    I("v_sqrt_f32 v26, v26"); rne("v26", "v26")
    I("v_rcp_f32 v27, v26")
    I("v_lshlrev_b32 v60, 16, v60")
    I("v_sub_f32 v60, v60, v24"); rne("v60", "v60")
    I("v_mul_f32 v28, v60, v27")
    I("v_fma_f32 v29, -v28, v26, v60")
    I("v_fmac_f32 v28, v29, v27")
    I("v_cvt_pk_bf16_f32 v60, v28, v28")
    I("v_and_b32 v56, 0xffff0000, v60")
    I("v_mov_b32 v57, v56")
    I("v_permlane32_swap_b32 v56, v57")
    a.wait_vm("U1")
    for m, (r0, r1, acc) in enumerate(((40, 44, 16), (48, 52, 24))):
        for k in range(4):
            I(f"v_lshlrev_b32 v32, 16, v{r0+k}"); I(f"v_and_b32 v33, 0xffff0000, v{r0+k}")
            I(f"v_lshlrev_b32 v34, 16, v{r1+k}"); I(f"v_and_b32 v35, 0xffff0000, v{r1+k}")
            I(f"v_mul_f32 v{acc+2*k}, v32, v56"); I(f"v_mul_f32 v{acc+2*k+1}, v33, v56")
            I(f"v_fmac_f32 v{acc+2*k}, v34, v57"); I(f"v_fmac_f32 v{acc+2*k+1}, v35, v57")
    for st in (1, 2, 4, 8):
        for r in range(16, 32):
            I(f"v_add_f32_dpp v{r}, v{r}, v{r} row_shr:{st} row_mask:0xf bank_mask:0xf")
    for r in range(16, 32):
        I(f"v_add_f32_dpp v{r}, v{r}, v{r} row_bcast:15 row_mask:0xa bank_mask:0xf")
    I("s_mov_b32 exec_lo, 0x80000000"); I("s_mov_b32 exec_hi, 0x80000000")
    I(f"ds_write_b128 v63, v[16:19] offset:{L_FP}")
    I(f"ds_write_b128 v63, v[20:23] offset:{L_FP+16}")
    I(f"ds_write_b128 v63, v[24:27] offset:{L_FP+64}")
    I(f"ds_write_b128 v63, v[28:31] offset:{L_FP+80}")
    I("s_mov_b64 exec, -1")
    def buildB(dst, src, n):
        for d in range(4):
            I(f"v_and_b32_dpp v{dst+d}, {src}, v{8+d} row_newbcast:{n} row_mask:0xf bank_mask:0xf")
    buildB(32, "v60", 0)
    for t in range(16):
        cur = 32 + 4 * (t & 1); nxt = 32 + 4 * ((t + 1) & 1)
        if t + 1 < 16: buildB(nxt, "v60", t + 1)
        a.wait_vm(f"Q{t}")
        I(f"v_mfma_f32_16x16x32_bf16 v[56:59], {QW(t)}, v[{cur}:{cur+3}], {'0' if t == 0 else 'v[56:59]'}")
    def issueWO(t):
        if rot:
            I(f"s_add_u32 s100, s96, {t*8192}"); I("s_and_b32 s100, s100, 0x1e000"); I("s_lshr_b32 s100, s100, 2")
            I(f"buffer_load_dwordx4 {QW(t)}, v4, {WO}, s100 offen {w_flags}", f"O{t}")
        else:
            I(f"s_mov_b32 s100, {t*2048}")
            I(f"buffer_load_dwordx4 {QW(t)}, v4, {WO}, s100 offen {w_flags}", f"O{t}")
    for t in range(4): issueWO(t)
    for r in range(4):
        I(f"ds_write_b32 v6, v{56+r} offset:{L_QP + 32*r}")
    for t in range(4, 16): issueWO(t)
    a.wait_lgkm(0)
    I("s_barrier")
    stamp()
    I("v_lshlrev_b32 v32, 3, v0")
    for w in range(8):
        I(f"ds_read_b64 v[{16+2*w}:{17+2*w}], v32 offset:{L_QP + 512*w}")
    I(f"buffer_load_dword v63, off, {DBG}, 0 sc1", "cnt")
    I(f"buffer_load_dwordx4 v[56:59], v5, {WD}, 0 offen {w_flags}", "D0")
    for s in range(4):
        I(f"s_mov_b32 s{16+2*s}, {0x000F000F << (4*s)}"); I(f"s_mov_b32 s{17+2*s}, {0x000F000F << (4*s)}")
    I("s_mov_b32 s24, 0x00FF00FF"); I("s_mov_b32 s25, 0x00FF00FF")
    a.wait_lgkm(0)
    for h in (8, 4, 2):
        for k in range(h):
            I(f"v_add_f32 v{16+k}, v{16+k}, v{16+h+k}")
    I("v_cvt_pk_bf16_f32 v16, v16, v17")
    I("v_lshlrev_b32 v32, 2, v0")
    I(f"ds_write_b32 v32, v16 offset:{L_QS}")
    a.wait_lgkm(0)
    I(f"ds_read_b128 v[16:19], v61 offset:{L_QS}")
    a.wait_lgkm(0)
    for s in range(4):
        for d in range(4):
            I(f"v_cndmask_b32 v{40+4*s+d}, 0, v{16+d}, s[{16+2*s}:{17+2*s}]")
    I(f"s_mov_b32 s26, {f32(SCALE)}")
    def post(GX):
        acc = 24 + 4 * (GX & 1); S = f"v{32+GX}"
        I(f"v_mov_b32_dpp {S}, v{acc} quad_perm:[0,0,0,0] row_mask:0xf bank_mask:0xf")
        for c in (1, 2, 3):
            I(f"v_add_f32_dpp {S}, v{acc+c}, {S} quad_perm:[{c},{c},{c},{c}] row_mask:0xf bank_mask:0xf")
        rne(S, S)
        I(f"v_mul_f32 {S}, s26, {S}")
        rne(S, S)
        if GX == 0: I(f"v_mov_b32 v60, {S}")
        else: I(f"v_max_f32 v60, v60, {S}")
    for GX in range(8):
        acc = 24 + 4 * (GX & 1)
        for s in range(4):
            t = 4 * GX + s
            a.wait_vm(f"K{t}")
            I(f"v_mfma_f32_16x16x32_bf16 v[{acc}:{acc+3}], {KB(t)}, v[{40+4*s}:{43+4*s}], {'0' if s == 0 else f'v[{acc}:{acc+3}]'}")
            if t < W: issueV(t)
            if s == 0 and GX > 0: post(GX - 1)
    post(7)
    stamp()
    wave_red("v_max_f32", ["v60"], ["v16"], steps=(8, 4))
    I(f"s_mov_b32 s26, {f32(LOG2E)}")
    for GX in range(8):
        I(f"v_sub_f32 v{32+GX}, v{32+GX}, v60")
    for GX in range(8):
        I(f"v_mul_f32 v{32+GX}, s26, v{32+GX}")
    for GX in range(8):
        I(f"v_exp_f32 v{32+GX}, v{32+GX}")
    I("v_add_f32 v61, v32, v33")
    for GX in range(2, 8):
        I(f"v_add_f32 v61, v61, v{32+GX}")
    for GX in range(8):
        I(f"v_cvt_pk_bf16_f32 v{32+GX}, v{32+GX}, v{32+GX}")
    wave_red("v_add_f32", ["v61"], ["v16"], steps=(8, 4))
    I("v_and_b32 v61, -2, v61")
    I("v_mov_b32 v16, s99")
    I("s_mov_b64 exec, 1")
    I(f"buffer_store_dwordx2 v[60:61], v16, {WS}, 0 offen sc1", "pubst")
    I("s_mov_b64 exec, -1")
    I("s_mov_b32 s100, 2048")
    I(f"buffer_load_dwordx4 v[52:55], v5, {WD}, s100 offen {w_flags}", "D1")
    for m in range(2):
        for w in range(8):
            dst = (16 + 2 * w) if w < 4 else (40 + 2 * (w - 4))
            I(f"ds_read_b64 v[{dst}:{dst+1}], v62 offset:{L_FP + 64*m + 128*w}")
        a.wait_lgkm(0)
        for k in range(8):
            I(f"v_add_f32 v{16+k}, v{16+k}, v{40+k}")
        for h in (4, 2):
            for k in range(h):
                I(f"v_add_f32 v{16+k}, v{16+k}, v{16+h+k}")
        rne(f"v{48+2*m}", "v16"); rne(f"v{49+2*m}", "v17")
    c1 = -2.0 * 0.7978845608028654 * LOG2E
    for k in range(2):
        g = f"v{48+k}"; t = f"v{16+k}"
        I(f"v_mul_f32 {t}, {g}, {g}")
        I(f"v_mul_f32 {t}, {f32(0.044715)}, {t}")
        I(f"v_fma_f32 {t}, {t}, {g}, {g}")
        I(f"v_mul_f32 {t}, {f32(c1)}, {t}")
        I(f"v_exp_f32 {t}, {t}")
        I(f"v_add_f32 {t}, 1.0, {t}")
        I(f"v_rcp_f32 {t}, {t}")
        I(f"v_mul_f32 {t}, {g}, {t}")
        rne(t, t)
        I(f"v_mul_f32 {t}, {t}, v{50+k}")
    I("v_cvt_pk_bf16_f32 v62, v16, v17")
    I("v_and_b32 v48, 31, v0"); I("v_lshlrev_b32 v48, 3, v48")
    I("s_and_b32 s100, s99, 0xffffff00"); I("v_add_u32 v48, s100, v48")
    def permB(dst, src, n):
        I(f"v_mov_b32_dpp v47, {src} row_newbcast:{n} row_mask:0xf bank_mask:0xf")
        for d in range(4):
            I(f"v_perm_b32 v{dst+d}, v47, v47, v{12+d}")
    buildB(16, "v32", 0)
    for t in range(32):
        cur = 16 + 4 * (t & 1); nxt = 16 + 4 * ((t + 1) & 1)
        if t + 1 < 32: buildB(nxt, f"v{32 + ((t+1) >> 2)}", 4 * ((t + 1) & 3))
        a.wait_vm(f"V{t}")
        I(f"v_mfma_f32_16x16x32_bf16 v[24:27], {KB(t)}, v[{cur}:{cur+3}], {'0' if t == 0 else 'v[24:27]'}")
        if t == stats_at:
            a.wait_vm("cnt")
            I("v_readfirstlane_b32 s100, v63")
            I("s_cmp_eq_u32 s100, 256")
            I("s_cbranch_scc1 L_cnt_ok")
            I("s_mov_b32 s101, 0")
            a.raw("L_cnt_poll:")
            a.raw(f"  s_sleep 2")
            a.raw(f"  buffer_load_dword v63, off, {DBG}, 0 sc1")
            a.raw("  s_waitcnt vmcnt(0)")
            a.raw("  v_readfirstlane_b32 s100, v63")
            a.raw("  s_add_u32 s101, s101, 1")
            a.raw("  s_cmp_ge_u32 s101, 0x10000")
            a.raw("  s_cbranch_scc1 L_cnt_ok")
            a.raw("  s_cmp_eq_u32 s100, 256")
            a.raw("  s_cbranch_scc0 L_cnt_poll")
            a.raw("L_cnt_ok:")
            I(f"buffer_load_dwordx2 v[40:41], v48, {WS}, 0 offen sc1", "stats")
        if t + W < 32: issueV(t + W)
        if t == 2:
            a.wait_vm("D0")
            permB(40, "v62", 0)
            I("v_mfma_f32_16x16x32_bf16 v[28:31], v[56:59], v[40:43], 0")
        if t == 31 - 2:
            a.wait_vm("D1")
            permB(56, "v62", 1)
            I("v_mfma_f32_16x16x32_bf16 v[28:31], v[52:55], v[56:59], v[28:31]")
            a.wait_vm("stats")
            I("v_max_u32 v42, v40, v41")
            I("v_cmp_eq_u32 vcc, -1, v42")
            I("s_cbranch_vccz L_st_ok")
            I("s_mov_b32 s101, 0")
            a.raw("L_st_poll:")
            a.raw("  s_sleep 2")
            a.raw(f"  buffer_load_dwordx2 v[40:41], v48, {WS}, 0 offen sc1")
            a.raw("  s_waitcnt vmcnt(0)")
            a.raw("  v_max_u32 v42, v40, v41")
            a.raw("  v_cmp_eq_u32 vcc, -1, v42")
            a.raw("  s_add_u32 s101, s101, 1")
            a.raw("  s_cmp_ge_u32 s101, 0x10000")
            a.raw("  s_cbranch_scc1 L_st_ok")
            a.raw("  s_nop 4")
            a.raw("  s_cbranch_vccnz L_st_poll")
            a.raw("L_st_ok:")
            a.raw("  s_nop 1")
            I("v_mov_b32 v42, v40")
            wave_red("v_max_f32", ["v42"], ["v43"])
            I("v_sub_f32 v43, v40, v42"); I("v_mul_f32 v43, s26, v43"); I("v_exp_f32 v43, v43")
            I("v_mul_f32 v43, v43, v41")
            wave_red("v_add_f32", ["v43"], ["v44"])
            I("v_sub_f32 v44, v60, v42"); I("v_mul_f32 v44, s26, v44"); I("v_exp_f32 v44, v44")
            I("v_rcp_f32 v45, v43")
            I("v_add_f32 v44, v44, v44")
            I("v_mul_f32 v46, v44, v45")
            I("v_fma_f32 v47, -v46, v43, v44"); I("v_fmac_f32 v46, v47, v45")
    stamp()
    for r in range(4):
        I(f"v_mul_f32 v{24+r}, v46, v{24+r}")
    for r in range(4):
        I(f"ds_write_b32 v6, v{24+r} offset:{L_OP + 32*r}")
    a.wait_lgkm(0)
    I("s_barrier")
    for w in range(8):
        I(f"ds_read_b64 v[{32+2*w}:{33+2*w}], v3 offset:{L_OP + 512*w}")
    if not two_kernel:
        I("s_and_b32 s100, s12, 127"); I("s_lshl_b32 s101, s100, 3")
        I("v_mov_b32 v16, s101")
        I(f"buffer_load_dwordx2 v[52:53], v16, {X}, 0 offen", "xo")
        I("s_lshl_b32 s100, s100, 4"); I("s_lshl_b32 s101, s8, 18"); I("s_add_u32 s100, s100, s101")
        I("v_lshl_add_u32 v54, v0, 11, s100")
    a.wait_lgkm(0)
    for h in (8, 4, 2):
        for k in range(h):
            I(f"v_add_f32 v{32+k}, v{32+k}, v{32+h+k}")
    I("v_cvt_pk_bf16_f32 v32, v32, v33")
    permB(16, "v32", 0)
    for t in range(16):
        cur = 16 + 4 * (t & 1); nxt = 16 + 4 * ((t + 1) & 1)
        if t + 1 < 16: permB(nxt, "v32", t + 1)
        a.wait_vm(f"O{t}")
        I(f"v_mfma_f32_16x16x32_bf16 v[28:31], {QW(t)}, v[{cur}:{cur+3}], v[28:31]")
    I("v_cndmask_b32 v16, v31, v28, s[24:25]")
    I("v_cndmask_b32 v17, v29, v30, s[24:25]")
    I("v_add_f32_dpp v16, v17, v16 row_ror:8 row_mask:0xf bank_mask:0xf")
    I("v_and_b32 v16, -2, v16")
    I(f"buffer_store_dword v16, v7, {WS}, 0 offen sc1", "puby")
    stamp()
    def reduce_tail(poll):
        I("s_mov_b32 s100, 0x20000")
        I("s_mov_b32 s101, 0")
        if poll:
            a.raw("L_y_poll:")
        a.raw(f"  buffer_load_dwordx4 v[16:19], v54, {WS}, 0 offen sc1")
        a.raw(f"  buffer_load_dwordx4 v[20:23], v54, {WS}, s100 offen sc1")
        a.raw("  s_waitcnt vmcnt(0)")
        a.vm = []
        if poll:
            a.raw("  v_max3_u32 v24, v16, v17, v18")
            a.raw("  v_max3_u32 v25, v19, v20, v21")
            a.raw("  v_max3_u32 v24, v22, v23, v24")
            a.raw("  v_max_u32 v24, v24, v25")
            a.raw("  v_cmp_eq_u32 vcc, -1, v24")
            a.raw("  s_add_u32 s101, s101, 1")
            a.raw("  s_cmp_ge_u32 s101, 0x10000")
            a.raw("  s_cbranch_scc1 L_y_ok")
            a.raw("  s_nop 3")
            a.raw("  s_cbranch_vccz L_y_ok")
            if poll_sleep: a.raw(f"  s_sleep {poll_sleep}")
            a.raw("  s_branch L_y_poll")
            a.raw("L_y_ok:")
        for k in range(4):
            I(f"v_add_f32 v{16+k}, v{16+k}, v{20+k}")
        wave_red("v_add_f32", ["v16", "v17", "v18", "v19"], ["v20", "v21", "v22", "v23"])
        I("v_lshlrev_b32 v20, 16, v52"); I("v_and_b32 v21, 0xffff0000, v52")
        I("v_lshlrev_b32 v22, 16, v53"); I("v_and_b32 v23, 0xffff0000, v53")
        for k in range(4):
            I(f"v_add_f32 v{16+k}, v{16+k}, v{20+k}")
        I("v_cvt_pk_bf16_f32 v16, v16, v17"); I("v_cvt_pk_bf16_f32 v17, v18, v19")
        I("s_lshl_b32 s100, s12, 3"); I("v_mov_b32 v18, s100")
        I("s_mov_b64 exec, 1")
        I(f"buffer_store_dwordx2 v[16:17], v18, {OUT}, 0 offen")
    if not two_kernel:
        I("s_cmp_lg_u32 s10, 0")
        I("s_cbranch_scc1 L_end")
        reduce_tail(True)
    elif stamps:
        I("s_cmp_lg_u32 s10, 0")
        I("s_cbranch_scc1 L_end")
    if stamps:
        a.wait_vm_all()
        stamp()
        a.wait_lgkm(0)
        n = nstamp[0]
        I("s_mov_b64 exec, 1")
        I(f"s_mul_i32 s100, s2, {8*n}"); I(f"s_add_u32 s100, s100, {WS_STAMP}"); I("v_mov_b32 v18, s100")
        for k in range(n):
            I(f"v_mov_b32 v16, s{84+2*k}"); I(f"v_mov_b32 v17, s{85+2*k}")
            I(f"buffer_store_dwordx2 v[16:17], v18, {WS}, 0 offen offset:{8*k}")
            I("s_nop 1")
    a.raw("L_end:")
    I("s_endpgm")
    body = a.text()
    desc = lambda name, nv, ns: f""".amdhsa_kernel {name}
  .amdhsa_next_free_vgpr {nv}
  .amdhsa_next_free_sgpr {ns}
  .amdhsa_accum_offset {nv}
  .amdhsa_group_segment_fixed_size 0
  .amdhsa_kernarg_size 96
  .amdhsa_user_sgpr_count 2
  .amdhsa_user_sgpr_kernarg_segment_ptr 1
  .amdhsa_system_sgpr_workgroup_id_x 1
  .amdhsa_float_denorm_mode_32 3
.end_amdhsa_kernel
"""
    out = HEADER
    if two_kernel:
        out += f"; @launch kernel={NAME}_kernel grid=(256,1,1) block=(512,1,1) lds={LDS_BYTES}\n"
        out += f"; @launch kernel=reduce_kernel grid=(256,1,1) block=(64,1,1) lds=0\n"
    else:
        out += f"; @launch grid=(256,1,1) block=(512,1,1) lds={LDS_BYTES}\n"
    out += f'.amdgcn_target "amdgcn-amd-amdhsa--gfx950"\n.text\n.globl {NAME}_kernel\n.p2align 8\n.type {NAME}_kernel,@function\n'
    out += body
    if two_kernel:
        a2 = Asm(); a = a2; I = a2.I
        a.raw(".globl reduce_kernel\n.p2align 8\n.type reduce_kernel,@function\nreduce_kernel:")
        I("s_cmp_ge_u32 s2, 256"); I("s_cbranch_scc1 L_end2")
        I("s_load_dwordx2 s[16:17], s[0:1], 0")
        I("s_load_dwordx2 s[34:35], s[0:1], 72")
        I("s_load_dwordx2 s[38:39], s[0:1], 88")
        I("s_mov_b32 s12, s2"); I("s_lshr_b32 s8, s2, 7")
        I("s_and_b32 s100, s12, 127"); I("s_lshl_b32 s100, s100, 4"); I("s_lshl_b32 s101, s8, 18"); I("s_add_u32 s100, s100, s101")
        I("v_lshl_add_u32 v54, v0, 11, s100")
        I("s_lshl_b32 s101, s12, 3"); I("v_mov_b32 v24, s101")
        a.wait_lgkm(0)
        def srd2(base, lo, hi, size):
            I(f"s_mov_b32 s{base}, s{lo}"); I(f"s_mov_b32 s{base+1}, s{hi}"); I(f"s_mov_b32 s{base+2}, {size}"); I(f"s_mov_b32 s{base+3}, 0x20000")
        srd2(40, 16, 17, 2048); srd2(72, 38, 39, 0x10000000); srd2(80, 34, 35, 2048)
        I(f"buffer_load_dwordx2 v[52:53], v24, {X}, 0 offen")
        I("s_mov_b32 s100, 0x20000")
        I(f"buffer_load_dwordx4 v[16:19], v54, {WS}, 0 offen")
        I(f"buffer_load_dwordx4 v[20:23], v54, {WS}, s100 offen")
        a.wait_vm_all()
        for k in range(4):
            I(f"v_add_f32 v{16+k}, v{16+k}, v{20+k}")
        regs = ["v16", "v17", "v18", "v19"]; tmps = ["v20", "v21", "v22", "v23"]
        for st in (8, 4, 2, 1):
            for r in regs: I(f"v_add_f32_dpp {r}, {r}, {r} row_ror:{st} row_mask:0xf bank_mask:0xf")
        for sw in ("v_permlane16_swap_b32", "v_permlane32_swap_b32"):
            for r, t in zip(regs, tmps): I(f"v_mov_b32 {t}, {r}")
            for r, t in zip(regs, tmps): I(f"{sw} {r}, {t}")
            for r, t in zip(regs, tmps): I(f"v_add_f32 {r}, {r}, {t}")
        I("v_lshlrev_b32 v20, 16, v52"); I("v_and_b32 v21, 0xffff0000, v52")
        I("v_lshlrev_b32 v22, 16, v53"); I("v_and_b32 v23, 0xffff0000, v53")
        for k in range(4): I(f"v_add_f32 v{16+k}, v{16+k}, v{20+k}")
        I("v_cvt_pk_bf16_f32 v16, v16, v17"); I("v_cvt_pk_bf16_f32 v17, v18, v19")
        I("s_mov_b64 exec, 1")
        I(f"buffer_store_dwordx2 v[16:17], v24, {OUT}, 0 offen")
        a.raw("L_end2:")
        I("s_endpgm")
        out += a.text()
    out += '.section .rodata,"a"\n.p2align 6\n' + desc(NAME + "_kernel", 256, 102)
    if two_kernel:
        out += ".p2align 6\n" + desc("reduce_kernel", 64, 102)
    return out

if __name__ == "__main__":
    import ast
    fn = sys.argv[1]
    kw = {}
    for x in sys.argv[2:]:
        k, v = x.split("=", 1)
        try: kw[k] = ast.literal_eval(v)
        except Exception: kw[k] = v
    open(fn, "w").write(gen(**kw))
```

```python
import re

def _regs(tok):
    tok = tok.strip()
    tok = re.sub(r"^(-|abs\(|neg\()+", "", tok).rstrip(")")
    tok = tok.strip("|")
    m = re.fullmatch(r"([vsa])\[(\d+):(\d+)\]", tok)
    if m:
        return [(m.group(1), i) for i in range(int(m.group(2)), int(m.group(3)) + 1)]
    m = re.fullmatch(r"([vsa])(\d+)", tok)
    if m:
        return [(m.group(1), int(m.group(2)))]
    if tok in ("vcc", "vcc_lo", "vcc_hi"):
        return [("s", 106), ("s", 107)]
    if tok in ("exec", "exec_lo", "exec_hi"):
        return [("s", 126), ("s", 127)]
    if tok == "m0":
        return [("s", 124)]
    return []

TRANS = ("v_exp_f32", "v_log_f32", "v_rcp_f32", "v_rsq_f32", "v_sqrt_f32", "v_sin_f32", "v_cos_f32", "v_rcp_iflag_f32")

class Asm:
    def __init__(self):
        self.lines = []
        self.t = 0
        self.wr = {}
        self.mfma_c_rd = {}
        self.store_rd = {}
        self.vm = []
        self.vm_done = set()
        self.maxvm = 0
        self.nops = 0

    def raw(self, s):
        self.lines.append(s)

    def comment(self, s):
        self.lines.append("  ; " + s)

    def label(self, name):
        self.lines.append(name + ":")

    def skip_begin(self):
        return self.t

    def skip_end(self, t0):
        d = self.t - t0
        for r, w in list(self.wr.items()):
            if w[0] <= t0: self.wr[r] = (w[0] + d,) + tuple(w[1:])
        for r, c in list(self.mfma_c_rd.items()):
            if c[0] <= t0: self.mfma_c_rd[r] = (c[0] + d, c[1])
        for r, c in list(self.store_rd.items()):
            if c <= t0: self.store_rd[r] = c + d

    def flush_hazards(self):
        self._nop(18)

    def _nop(self, n):
        while n > 0:
            k = min(n, 16)
            self.lines.append(f"  s_nop {k-1}")
            self.t += k
            self.nops += k
            n -= k

    def I(self, text, tag=None):
        text = text.strip()
        mn, _, rest = text.partition(" ")
        ops = []
        depth = 0; cur = ""
        for ch in rest:
            if ch == "[": depth += 1
            if ch == "]": depth -= 1
            if ch == "," and depth == 0:
                ops.append(cur.strip()); cur = ""
            else:
                cur += ch
        if cur.strip():
            ops.append(cur.strip())
        mods = ""
        if ops:
            last = ops[-1].split()
            if len(last) > 1:
                ops[-1] = last[0]; mods = " ".join(last[1:])
        R = [_regs(o) for o in ops]
        reads, writes = [], []
        kind = None
        is_dpp = ("_dpp" in mn) or ("row_" in mods) or ("quad_perm" in mods) or ("wave_" in mods)
        need = 0
        def dist(reg):
            w = self.wr.get(reg)
            return (w, (self.t - w[0]) if w else 10**9)
        if mn.startswith("v_mfma"):
            passes = 8 if "32x32" in mn else 4
            kind = f"mfma{passes}"
            writes = R[0]; A, B, C = R[1], R[2], R[3]
            for r in A + B + C:
                w, d = dist(r)
                if w and w[1] in ("valu", "trans"):
                    need = max(need, 2 - d)
            for r in A + B:
                w, d = dist(r)
                if w and w[1].startswith("mfma"):
                    need = max(need, (8 if w[1] == "mfma4" else 12) - d)
            for r in C:
                w, d = dist(r)
                if w and w[1].startswith("mfma"):
                    if not (w[2] == tuple(C) and w[1] == kind):
                        need = max(need, (6 if w[1] == "mfma4" else 10) - d)
            for r in writes:
                w, d = dist(r)
                if w and w[1].startswith("mfma") and not (w[2] == tuple(writes)):
                    need = max(need, (8 if w[1] == "mfma4" else 12) - d)
            w, d = dist(("s", 126))
            if w and w[1] == "valu": need = max(need, 4 - d)
            reads = A + B + C
        elif mn.startswith("v_"):
            kind = "trans" if any(mn.startswith(t) for t in TRANS) else "valu"
            if mn.startswith("v_permlane") and "swap" in mn:
                writes = R[0] + R[1]; reads = R[0] + R[1]
                for r in reads:
                    w, d = dist(r)
                    if w and w[1] in ("valu", "trans"): need = max(need, 2 - d)
            elif mn.startswith("v_cmp"):
                writes = R[0]; reads = sum(R[1:], [])
            elif mn.startswith("v_readlane") or mn.startswith("v_readfirstlane"):
                writes = R[0]; reads = sum(R[1:], [])
                for r in R[1]:
                    w, d = dist(r)
                    if w and w[1] in ("valu", "trans"): need = max(need, 1 - d)
                if len(R) > 2:
                    for r in R[2]:
                        w, d = dist(r)
                        if w and w[1] in ("valu", "trans"): need = max(need, 4 - d)
            else:
                writes = R[0]; reads = sum(R[1:], [])
                if mn.startswith("v_fmac") or mn.startswith("v_dot2c") or is_dpp:
                    reads = reads + R[0]
                if mn.startswith("v_cndmask") and len(ops) == 3:
                    reads = reads + [("s", 106), ("s", 107)]
                if "_co_" in mn:
                    raise Exception("avoid carry ops in asmlib")
            for r in reads:
                w, d = dist(r)
                if not w: continue
                if r[0] == "s" and w[1] in ("valu", "trans"):
                    need = max(need, 2 - d)
                if w[1] == "trans" and kind != "trans":
                    need = max(need, 1 - d)
                if w[1].startswith("mfma"):
                    need = max(need, (8 if w[1] == "mfma4" else 12) - d)
            if is_dpp:
                for r in R[1]:
                    w, d = dist(r)
                    if w and w[1] in ("valu", "trans"): need = max(need, 2 - d)
            for r in writes:
                w, d = dist(r)
                if w and w[1].startswith("mfma"):
                    need = max(need, (8 if w[1] == "mfma4" else 12) - d)
                c = self.mfma_c_rd.get(r)
                if c: need = max(need, (3 if c[1] == 4 else 7) - (self.t - c[0]))
                sr = self.store_rd.get(r)
                if sr is not None: need = max(need, 2 - (self.t - sr))
        elif mn.startswith("buffer_") or mn.startswith("global_") or mn.startswith("ds_"):
            kind = "mem"
            is_load = ("load" in mn) or mn.startswith("ds_read") or mn.startswith("ds_bpermute") or mn.startswith("ds_swizzle")
            if is_load:
                writes = R[0]; reads = sum(R[1:], [])
            else:
                reads = sum(R, [])
                if "atomic" in mn and "sc0" in mods: writes = R[0]
            for r in reads:
                w, d = dist(r)
                if not w: continue
                if r[0] == "s" and w[1] in ("valu", "trans"): need = max(need, 5 - d)
                if w[1].startswith("mfma"): need = max(need, (8 if w[1] == "mfma4" else 12) - d)
            for r in writes:
                w, d = dist(r)
                if w and w[1].startswith("mfma"): need = max(need, (8 if w[1] == "mfma4" else 12) - d)
                sr = self.store_rd.get(r)
                if sr is not None: need = max(need, 1 - (self.t - sr))
        elif mn.startswith("s_"):
            kind = "salu"
            if mn in ("s_nop",):
                n = int(ops[0], 0) + 1
                self.lines.append("  " + text); self.t += n
                return
            if mn.startswith("s_cmp") or mn.startswith("s_cbranch") or mn in ("s_branch", "s_barrier", "s_waitcnt", "s_endpgm", "s_sleep", "s_setprio", "s_bitcmp1_b32", "s_bitcmp0_b32"):
                reads = sum(R, [])
            else:
                writes = R[0] if R else []
                reads = sum(R[1:], [])
                if "saveexec" in mn: writes = writes + [("s", 126), ("s", 127)]
            for r in reads:
                w, d = dist(r)
                if w and w[1] in ("valu", "trans"): need = max(need, 1 - d)
            if mn.startswith("s_cbranch_vcc"):
                w, d = dist(("s", 106))
                if w and w[1] in ("valu", "trans"): need = max(need, 5 - d)
        else:
            raise Exception("unknown instr " + text)
        if need > 0:
            self._nop(need)
        self.lines.append("  " + text)
        now = self.t
        for r in writes:
            if kind.startswith("mfma"):
                self.wr[r] = (now + 1, kind, tuple(writes))
            elif kind == "mem":
                self.wr.pop(r, None)
            else:
                self.wr[r] = (now + 1, kind, None)
        if kind.startswith("mfma"):
            for r in R[3]:
                self.mfma_c_rd[r] = (now + 1, int(kind[4:]))
        if kind == "mem" and not (("load" in mn) or mn.startswith("ds_")) and ("x3" in mn or "x4" in mn):
            for r in R[0]:
                self.store_rd[r] = now + 1
        self.t += 1
        if mn.startswith("buffer_") or mn.startswith("global_"):
            self.vm.append(tag if tag is not None else f"_anon{len(self.lines)}")
            self.maxvm = max(self.maxvm, len(self.vm))
            assert len(self.vm) <= 63, "too many outstanding vmem"

    def wait_vm(self, tag):
        if tag in self.vm_done:
            return
        assert tag in self.vm, tag
        i = self.vm.index(tag)
        n = len(self.vm) - 1 - i
        self.I(f"s_waitcnt vmcnt({n})")
        for x in self.vm[: i + 1]:
            self.vm_done.add(x)
        self.vm = self.vm[i + 1:]

    def wait_vm_all(self):
        self.I("s_waitcnt vmcnt(0)")
        for x in self.vm: self.vm_done.add(x)
        self.vm = []

    def wait_lgkm(self, n=0):
        self.I(f"s_waitcnt lgkmcnt({n})")

    def text(self):
        return "\n".join(self.lines) + "\n"
```

```python
import sys, struct
from asmlib import Asm
NAME = "parallel_sum__mha_block_cached__geglu_ffn__decode"
HEADER = open("cdna_kernels/" + NAME + ".s.ref").read().split("; Override launch")[0]

def f32(x):
    return "0x%08x" % struct.unpack("<I", struct.pack("<f", x))[0]

WS_ST, WS_F, WS_Q, WS_EP, WS_Y = 0x100000, 0x110000, 0x150000, 0x0, 0x200000
WS_STAMP = 0x8000000
L_QP, L_FP, L_OP, L_QS, L_H, L_SC, L_CNT, L_Y = 0, 8192, 16384, 20480, 20992, 21024, 21056, 21120
LDS_BYTES = 22272
LOG2E = 1.4426950408889634
SCALE = 128 ** -0.5

def gen(kf="", vf="", wf="", G=32, stamps=False, poll_sleep=4, hl_pos=-1, wo_start=0, wo_every=2,
        prio=(3, 1, 0), gw=0, hsleep=32, qsleep=8, vlag=32, smap=1, cut=0):
    a = Asm()
    I = a.I
    nstamp = [0]
    SREG = [84, 86, 88, 90, 92, 94, 28, 30, 32, 34, 36, 38]
    def stamp(fine=False):
        if stamps and (not fine or stamps == 2):
            k = nstamp[0]; nstamp[0] += 1
            I(f"s_memrealtime s[{SREG[k]}:{SREG[k]+1}]")
    def rne(d, s):
        I(f"v_cvt_pk_bf16_f32 {d}, {s}, {s}")
        I(f"v_and_b32 {d}, 0xffff0000, {d}")
    def wave_red(op, regs, tmps, steps=(8, 4, 2, 1), swaps=("v_permlane16_swap_b32", "v_permlane32_swap_b32")):
        for st in steps:
            for r in regs:
                I(f"{op}_dpp {r}, {r}, {r} row_ror:{st} row_mask:0xf bank_mask:0xf")
        for sw_ in swaps:
            for r, t in zip(regs, tmps):
                I(f"v_mov_b32 {t}, {r}")
            for r, t in zip(regs, tmps):
                I(f"{sw_} {r}, {t}")
            for r, t in zip(regs, tmps):
                I(f"{op} {r}, {r}, {t}")
    def pack_red(r):
        I(f"v_permlane32_swap_b32 v{r}, v{r+1}"); I(f"v_permlane32_swap_b32 v{r+2}, v{r+3}")
        I(f"v_add_f32 v{r}, v{r}, v{r+1}"); I(f"v_add_f32 v{r+2}, v{r+2}, v{r+3}")
        I(f"v_permlane16_swap_b32 v{r}, v{r+2}")
        I(f"v_add_f32 v{r}, v{r}, v{r+2}")
        I(f"v_add_f32_dpp v{r}, v{r}, v{r} row_ror:8 row_mask:0xf bank_mask:0xf")
    def srd(base, lo, hi, off, size):
        if off is None:
            I(f"s_mov_b32 s{base}, s{lo}"); I(f"s_mov_b32 s{base+1}, s{hi}")
        else:
            I(f"s_add_u32 s{base}, s{lo}, {off}"); I(f"s_addc_u32 s{base+1}, s{hi}, 0")
        I(f"s_mov_b32 s{base+2}, {size}")
        I(f"s_mov_b32 s{base+3}, 0x20000")
    def setprio(k):
        if prio: I(f"s_setprio {prio[k]}")
    X, K, V, WQ, WO, WF, WG2, WD, WS, _U, OUT = [f"s[{40+4*i}:{43+4*i}]" for i in range(11)]
    TAG = "s76"
    KB = lambda t: f"v[{128+4*t}:{131+4*t}]"
    QW = lambda t: f"v[{64+4*t}:{67+4*t}]"
    def tagchk(acc, regs):
        c = [f"v_msad_u8 {acc}, {regs[0]}, {TAG}, 0"]
        c += [f"v_msad_u8 {acc}, {r}, {TAG}, {acc}" for r in regs[1:]]
        return c + [f"v_cmp_ne_u32 vcc, 0, {acc}"]
    def tagchk2(t0, t1, regs):
        return [f"v_bitop3_b32 {t0}, {regs[0]}, {regs[1]}, {TAG} bitop3:0x7e",
                f"v_bitop3_b32 {t1}, {regs[2]}, {regs[3]}, {TAG} bitop3:0x7e",
                f"v_or_b32 {t0}, {t0}, {t1}", f"v_and_b32 {t0}, 3, {t0}", f"v_cmp_ne_u32 vcc, 0, {t0}"]
    def poll(label, load, check, sleep):
        for c in check: I(c)
        I(f"s_cbranch_vccz {label}_ok")
        I("s_mov_b32 s101, 0")
        a.raw(f"{label}_poll:")
        a.raw(f"  s_sleep {sleep}")
        a.raw("  " + load)
        a.raw("  s_waitcnt vmcnt(0)")
        for c in check: a.raw("  " + c)
        a.raw("  s_add_u32 s101, s101, 1")
        a.raw("  s_cmp_ge_u32 s101, 0x4000")
        a.raw(f"  s_cbranch_scc1 {label}_ok")
        a.raw("  s_nop 4")
        a.raw(f"  s_cbranch_vccnz {label}_poll")
        a.raw(f"{label}_ok:")
        a.raw("  s_nop 1")
    sk = [0]
    def only_if(cond, name):
        I(cond); I(f"s_cbranch_scc0 L_sk_{name}"); sk[0] = a.skip_begin()
    def end_if(name):
        a.raw(f"L_sk_{name}:"); a.skip_end(sk[0])
    Ks = [f"K{t}" for t in range(32)]
    order = Ks[:G] + ["QG"] + Ks[G:]
    nB = len(order)
    no = 0
    for t in range(32):
        order.append(f"V{t}")
        if t >= wo_start and (t - wo_start) % wo_every == 0 and no < 16:
            if no == 0: order += ["D0", "xo"]
            order.append(f"O{no}"); no += 1
    assert no == 16, no
    ready = set(Ks + ["QG", "D0", "xo"] + [f"O{t}" for t in range(16)])
    qpos = [0]
    QG_LD = f"buffer_load_dwordx4 v[28:31], v13, {WS}, 0 offen sc1"
    FG_LD = f"buffer_load_dwordx4 v[52:55], v47, {WG2}, 0 offen sc1"
    ST_LD = f"buffer_load_dwordx4 v[48:51], v1, {WS}, 0 offen sc1"
    def issue_one():
        if qpos[0] >= len(order): return False
        n = order[qpos[0]]
        if n not in ready: return False
        qpos[0] += 1
        t = int(n[1:]) if n[1:].isdigit() else None
        if n[0] in "KV":
            so = t * 4096
            if so: I(f"s_mov_b32 s5, {so}")
            sO = "s5" if so else "0"
            if n[0] == "K": I(f"buffer_load_dwordx4 {KB(t)}, v1, {K}, {sO} offen {kf}", n)
            else:           I(f"buffer_load_dwordx4 {KB(t)}, v2, {V}, {sO} offen {vf}", n)
        elif n == "QG":
            I(QG_LD, n)
        elif n[0] == "O":
            I(f"s_add_u32 s5, s97, {t*2048}"); I("s_and_b32 s5, s5, 0x7800")
            I(f"buffer_load_dwordx4 {QW(t)}, v4, {WO}, s5 offen {wf}", n)
        elif n == "D0":
            I(f"buffer_load_dwordx4 v[56:59], v5, {WD}, 0 offen {wf}", n)
        elif n == "xo":
            I("s_lshl_b32 s5, s2, 6"); I("s_and_b32 s5, s5, 0x7c0")
            I(f"buffer_load_ushort v14, v15, {X}, s5 offen", n)
        else:
            raise Exception(n)
        return True
    def fill():
        while len(a.vm) < 60 and issue_one(): pass
    need = a.wait_vm

    a.raw(f"{NAME}_kernel:")
    stamp()
    I("s_cmp_ge_u32 s2, 256")
    I("s_cbranch_scc1 L_end")
    I("s_load_dwordx16 s[16:31], s[0:1], 0")
    I("s_load_dwordx8 s[32:39], s[0:1], 64")
    setprio(0)
    I("v_lshrrev_b32 v1, 6, v0")
    I("v_and_b32 v0, 63, v0")
    for k in range(4): I(f"v_mov_b32 v{16+k}, 0")
    I("v_readfirstlane_b32 s10, v1")
    I(f"ds_write_b128 v16, v[16:19] offset:{L_CNT}")
    I("s_and_b32 s3, s2, 7")
    I("s_lshr_b32 s4, s2, 3")
    if smap:
        I("s_lshr_b32 s5, s4, 3"); I("s_and_b32 s7, s4, 7")
    else:
        I("s_and_b32 s5, s4, 3"); I("s_lshr_b32 s7, s4, 2")
    I("s_lshl_b32 s6, s3, 2")
    I("s_add_u32 s6, s6, s5")
    I("s_lshl_b32 s14, s5, 3"); I("s_add_u32 s14, s14, s3")
    I("s_lshr_b32 s8, s10, 2"); I("s_and_b32 s9, s10, 3")
    I("s_lshl_b32 s11, s8, 5")
    I("s_add_u32 s11, s11, s6")
    I("v_and_b32 v8, 15, v0")
    I("v_lshrrev_b32 v9, 4, v0")
    I("v_and_b32 v12, 3, v0")
    I("v_lshlrev_b32 v14, 5, v0")
    I("s_lshl_b32 s97, s9, 7"); I("s_lshl_b32 s98, s7, 2"); I("s_add_u32 s98, s98, s97")
    I("v_lshl_add_u32 v5, v9, 5, s98")
    I("v_add_lshl_u32 v13, v5, v12, 1")
    I("v_lshlrev_b32 v3, 13, v5"); I("v_lshl_add_u32 v3, v8, 4, v3")
    I("v_mul_u32_u24 v5, 2752, v5"); I("v_lshl_add_u32 v5, v8, 4, v5")
    I("v_and_b32 v1, 12, v0"); I("v_lshlrev_b32 v1, 6, v1")
    I("v_lshl_add_u32 v1, v9, 6, v1")
    I("v_lshl_add_u32 v1, v12, 4, v1")
    I("s_lshl_b32 s96, s9, 10")
    I("v_add_u32 v1, s96, v1")
    I("v_lshl_add_u32 v2, v0, 4, s96")
    I("s_lshl_b32 s100, s11, 20"); I("s_lshl_b32 s101, s7, 17"); I("s_add_u32 s100, s100, s101")
    I("s_cmp_ge_u32 s14, 11"); I("s_cselect_b32 s15, 11, 0"); I("s_sub_u32 s15, s14, s15"); I("s_lshl_b32 s15, s15, 8")
    I("s_sub_u32 s98, 1409024, s15")
    I("s_cmp_lt_u32 s14, 22"); I("s_cselect_b32 s98, s98, 0")
    I("s_lshl_b32 s96, s6, 8"); I("s_sub_u32 s101, 0x400000, s96")
    I("s_mov_b32 s12, 8192"); I("s_mov_b32 s13, 16384"); I("s_mov_b32 s4, 24576"); I("s_mov_b32 s5, 5504")
    I(f"s_lshl_b32 s99, s6, 13"); I(f"s_add_u32 s99, s99, {WS_Q}")
    a.wait_lgkm(0)
    I(f"s_load_dword s77, s[38:39], {WS_EP}")
    srd(40, 16, 17, None, 2048)
    srd(44, 18, 19, "s100", 131072)
    srd(72, 38, 39, None, 0x10000000)
    I("s_cmp_lt_u32 s10, 4")
    I("s_cbranch_scc1 L_p0")
    tsk = a.skip_begin()
    I(f"buffer_load_dwordx4 v[40:43], v14, {X}, 0 offen", "xr0")
    I(f"buffer_load_dwordx4 v[44:47], v14, {X}, 0 offen offset:16", "xr1")
    srd(52, 22, 23, "s96", "s101")
    I(f"buffer_load_ushort v62, v13, {X}, 0 offen", "xe0")
    I(f"buffer_load_ushort v63, v13, {X}, 0 offen offset:1024", "xe1")
    for t, so in enumerate(("0", "s12", "s13", "s4")):
        I(f"buffer_load_dwordx4 {QW(t)}, v3, {WQ}, {so} offen {wf}", f"Q{t}")
    I("s_cmp_ge_u32 s14, 11"); I("s_cselect_b32 s28, s30, s28"); I("s_cselect_b32 s29, s31, s29")
    srd(60, 28, 29, "s15", "s98")
    for t in range(4):
        I(f"buffer_load_dwordx4 {QW(4+t)}, v5, {WF}, {'0' if t < 2 else 's5'} offen offset:{2752*(t&1)} {wf}", f"F{t}")
    I("s_barrier")
    I("v_lshrrev_b32 v34, 3, v8")
    I("v_and_b32 v15, 7, v8")
    I("v_lshlrev_b32 v6, 2, v15"); I("v_lshl_add_u32 v6, v9, 7, v6")
    I("v_lshl_add_u32 v6, v34, 9, v6"); I("s_lshl_b32 s4, s9, 10"); I("v_add_u32 v6, s4, v6")
    I("v_and_b32 v32, 1, v8"); I("v_lshlrev_b32 v32, 4, v32")
    I("v_mul_u32_u24 v34, 0x202, v34"); I("v_add_u32 v34, 0x100, v34")
    I("v_xor_b32 v34, 0xc0c, v34"); I("v_lshlrev_b32 v34, v32, v34")
    I("v_bfe_u32 v35, v8, 1, 2")
    for d in range(4):
        I(f"v_cmp_eq_u32 vcc, {d}, v35")
        I(f"v_cndmask_b32 v{12+d}, 0, v34, vcc")
    for d in range(4):
        I(f"v_xor_b32 v{12+d}, 0x0c0c0c0c, v{12+d}")
    I("s_lshl_b32 s4, s9, 8"); I("v_lshl_add_u32 v50, v0, 2, s4")
    I("s_lshl_b32 s4, s7, 10"); I("s_add_u32 s5, s4, s99"); I("v_add_u32 v51, s5, v50")
    I("s_lshl_b32 s5, s14, 13"); I("s_add_u32 s5, s5, s4"); I(f"s_add_u32 s5, s5, {WS_F}"); I("v_add_u32 v52, s5, v50")
    I("v_mov_b32 v53, 8"); I("v_mov_b32 v54, 1")
    a.wait_vm("xr1")
    stamp(True)
    for k in range(8):
        I(f"v_lshlrev_b32 v{16+2*k}, 16, v{40+k}")
        I(f"v_and_b32 v{17+2*k}, 0xffff0000, v{40+k}")
    for k in range(8):
        I(f"v_add_f32 v{32+k}, v{16+2*k}, v{17+2*k}")
    for h in (4, 2, 1):
        for k in range(h):
            I(f"v_add_f32 v{32+k}, v{32+k}, v{32+h+k}")
    wave_red("v_add_f32", ["v32"], ["v33"], swaps=("v_permlane16_swap_b32",))
    I(f"v_mul_f32 v32, {f32(1/512)}, v32")
    for k in range(16):
        I(f"v_sub_f32 v{16+k}, v{16+k}, v32")
    I("v_mul_f32 v34, v16, v16"); I("v_mul_f32 v35, v17, v17")
    for k in range(2, 16):
        I(f"v_fmac_f32 v{34+(k&1)}, v{16+k}, v{16+k}")
    I("v_add_f32 v34, v34, v35")
    wave_red("v_add_f32", ["v34"], ["v33"], swaps=("v_permlane16_swap_b32",))
    I(f"v_mul_f32 v34, {f32(1/512)}, v34")
    rne("v32", "v32"); rne("v34", "v34")
    I(f"v_add_f32 v34, {f32(1e-5)}, v34"); rne("v34", "v34")
    I("v_sqrt_f32 v34, v34"); rne("v34", "v34")
    I("v_rcp_f32 v36, v34")
    I("v_mov_b32 v33, v32"); I("v_mov_b32 v35, v34"); I("v_mov_b32 v37, v36")
    I("v_permlane32_swap_b32 v32, v33"); I("v_permlane32_swap_b32 v34, v35"); I("v_permlane32_swap_b32 v36, v37")
    a.wait_vm("xe1")
    for b in range(2): I(f"v_lshlrev_b32 v{62+b}, 16, v{62+b}")
    for b in range(2): I(f"v_sub_f32 v{62+b}, v{62+b}, v{32+b}")
    for b in range(2): rne(f"v{62+b}", f"v{62+b}")
    for b in range(2): I(f"v_mul_f32 v{16+b}, v{62+b}, v{36+b}")
    for b in range(2): I(f"v_fma_f32 v{18+b}, -v{16+b}, v{34+b}, v{62+b}")
    for b in range(2): I(f"v_fmac_f32 v{16+b}, v{18+b}, v{36+b}")
    I("v_cvt_pk_bf16_f32 v60, v16, v17")
    def buildB(dst, src, n):
        for d in range(4):
            I(f"v_and_b32_dpp v{dst+d}, {src}, v{8+d} row_newbcast:{n} row_mask:0xf bank_mask:0xf")
    for t in range(4): I(f"v_mov_b32_dpp v{16+t}, v60 row_newbcast:{t} row_mask:0xf bank_mask:0xf")
    for t in range(4):
        for d in range(4): I(f"v_perm_b32 v{32+4*t+d}, v{16+t}, v{16+t}, v{12+d}")
    for t in range(4):
        need(f"Q{t}")
        I(f"v_mfma_f32_16x16x32_bf16 v[56:59], {QW(t)}, v[{32+4*t}:{35+4*t}], {'0' if t == 0 else 'v[56:59]'}")
    for t in range(4):
        need(f"F{t}")
        I(f"v_mfma_f32_16x16x32_bf16 v[28:31], {QW(4+t)}, v[{32+4*t}:{35+4*t}], {'0' if t == 0 else 'v[28:31]'}")
    for r in range(4):
        I(f"ds_write_b32 v6, v{56+r} offset:{L_QP + 32*r}")
    for r in range(4):
        I(f"ds_write_b32 v6, v{28+r} offset:{L_FP + 32*r}")
    stamp(True)
    def lds_sync(name, va, v1, n):
        a.wait_lgkm(0)
        I("s_mov_b64 exec, 1")
        I(f"ds_add_u32 {va}, {v1} offset:{L_CNT}")
        I("s_mov_b64 exec, -1")
        I("s_mov_b32 s101, 0")
        a.raw(f"L_{name}:")
        a.raw(f"  ds_read_b32 {v1}, {va} offset:{L_CNT}")
        a.raw("  s_add_u32 s101, s101, 1")
        a.raw("  s_cmp_ge_u32 s101, 0x40000")
        a.raw(f"  s_cbranch_scc1 L_{name}_ok")
        a.raw("  s_waitcnt lgkmcnt(0)")
        a.raw(f"  v_readfirstlane_b32 s4, {v1}")
        a.raw("  s_nop 0")
        a.raw(f"  s_cmp_lt_u32 s4, {n}")
        a.raw(f"  s_cbranch_scc0 L_{name}_ok")
        a.raw("  s_sleep 1")
        a.raw(f"  s_branch L_{name}")
        a.raw(f"L_{name}_ok:")
    def mktag():
        I("s_and_b32 s76, s77, 0xff"); I("s_add_u32 s76, s76, 1"); I("s_cmp_eq_u32 s76, 0x100"); I("s_cselect_b32 s76, 1, s76")
    lds_sync("ps", "v53", "v54", 4)
    for k in range(2):
        I(f"ds_read2st64_b32 v[{20+2*k}:{21+2*k}], v50 offset0:{8*k} offset1:{8*k+4}")
    for k in range(2):
        I(f"ds_read2st64_b32 v[{24+2*k}:{25+2*k}], v50 offset0:{L_FP//256+8*k} offset1:{L_FP//256+8*k+4}")
    mktag()
    a.wait_lgkm(0)
    for o in (20, 24): I(f"v_add_f32 v{o}, v{o}, v{o+1}"); I(f"v_add_f32 v{o+2}, v{o+2}, v{o+3}")
    for o in (20, 24): I(f"v_add_f32 v{o}, v{o}, v{o+2}")
    for o in (20, 24): I(f"v_bfi_b32 v{o}, 3, {TAG}, v{o}")
    I(f"buffer_store_dword v20, v51, {WS}, 0 offen sc1", "pubq")
    I(f"buffer_store_dword v24, v52, {WS}, 0 offen sc1", "pubf")
    stamp(True)
    I("s_branch L_burst")
    a.raw("L_p0:")
    a.raw("  s_barrier")
    if stamps == 2:
        for k in (1, 2, 3): a.raw(f"  s_memrealtime s[{SREG[k]}:{SREG[k]+1}]")
    a.raw("L_burst:")
    a.skip_end(tsk)
    a.vm = []
    I("v_lshrrev_b32 v13, 3, v0"); I("v_lshlrev_b32 v13, 10, v13")
    I("v_and_b32 v15, 7, v0"); I("v_lshl_add_u32 v13, v15, 4, v13")
    I("s_lshl_b32 s4, s10, 7"); I("s_add_u32 s4, s4, s99"); I("v_add_u32 v13, s4, v13")
    setprio(1)
    while qpos[0] < nB: issue_one()
    setprio(0)
    srd(48, 20, 21, "s100", 131072)
    I("s_lshl_b32 s99, s11, 9"); I("s_lshl_b32 s100, s7, 6"); I("s_add_u32 s99, s99, s100")
    I("s_lshl_b32 s100, s9, 4"); I("s_add_u32 s99, s99, s100")
    I(f"s_add_u32 s99, s99, {WS_ST}")
    I("s_lshl_b32 s12, s6, 3"); I("s_add_u32 s12, s12, s7")
    I("s_lshl_b32 s13, s7, 1")
    I("s_lshl_b32 s97, s13, 11")
    I("s_lshl_b32 s100, s6, 17"); srd(56, 24, 25, "s100", 131072)
    srd(80, 34, 35, None, 2048)
    I("s_cmp_lt_u32 s2, 172"); I("s_cselect_b32 s100, 1409024, 0"); I("s_cselect_b32 s101, 0x10000000, 0")
    srd(68, 32, 33, None, "s100")
    srd(64, 38, 39, None, "s101")
    for s_ in range(4):
        I(f"s_mov_b32 s{16+2*s_}, {0x000F000F << (4*s_)}"); I(f"s_mov_b32 s{17+2*s_}, {0x000F000F << (4*s_)}")
    I("v_lshrrev_b32 v34, 3, v8")
    I("v_and_b32 v36, 3, v0")
    I("s_lshl_b32 s100, s10, 7"); I("v_lshl_add_u32 v35, v15, 4, s100")
    I("v_lshl_add_u32 v4, v9, 5, v34"); I("v_lshl_add_u32 v4, v4, 10, v35")
    I("v_lshl_add_u32 v5, v9, 1, v34"); I("v_lshl_add_u32 v5, v5, 10, v35")
    I("s_lshl_b32 s100, s2, 13"); I("v_add_u32 v5, s100, v5")
    I("v_add_u32 v3, s13, v8"); I("v_and_b32 v3, 15, v3"); I("v_lshl_add_u32 v3, v9, 4, v3"); I("v_lshlrev_b32 v3, 3, v3")
    I("v_lshlrev_b32 v6, 2, v15"); I("v_lshl_add_u32 v6, v9, 7, v6")
    I("s_lshl_b32 s100, s10, 9"); I("v_add_u32 v6, s100, v6")
    I("v_bfe_u32 v7, v8, 2, 1"); I("v_lshlrev_b32 v7, 4, v7")
    I("v_and_b32 v35, 1, v9"); I("v_add_lshl_u32 v7, v7, v35, 15")
    I("v_lshl_add_u32 v7, v34, 6, v7")
    I("v_lshrrev_b32 v35, 1, v9"); I("v_lshl_add_u32 v7, v35, 5, v7")
    I("v_lshl_add_u32 v7, v36, 3, v7")
    I("s_lshl_b32 s100, s10, 16"); I("s_lshl_b32 s101, s12, 7"); I("s_add_u32 s100, s100, s101")
    I(f"s_add_u32 s100, s100, {WS_Y}")
    I("v_add_u32 v7, s100, v7")
    I("v_lshl_add_u32 v61, v9, 2, v36"); I("v_lshlrev_b32 v61, 4, v61")
    I("s_lshl_b32 s100, s8, 8"); I("v_add_u32 v61, s100, v61")
    I("v_lshlrev_b32 v18, 3, v15")
    I("v_bfe_u32 v19, v0, 4, 1"); I("v_lshl_add_u32 v18, v19, 2, v18")
    I("v_lshrrev_b32 v19, 5, v0"); I("v_lshl_add_u32 v18, v19, 1, v18")
    I("s_lshl_b32 s100, s10, 6"); I("v_add_u32 v18, s100, v18")
    I("v_and_b32 v32, 1, v8"); I("v_lshlrev_b32 v32, 4, v32")
    I("v_mov_b32 v33, 0xffff"); I("v_lshlrev_b32 v33, v32, v33")
    I("v_bfe_u32 v35, v8, 1, 2")
    for d in range(4):
        I(f"v_cmp_eq_u32 vcc, {d}, v35")
        I(f"v_cndmask_b32 v{8+d}, 0, v33, vcc")
    I("v_and_b32 v17, 4, v0"); I("v_lshl_add_u32 v17, v34, 1, v17")
    I("v_mul_u32_u24 v17, 0x101, v17"); I("v_add_u32 v17, 0x100, v17")
    I("v_xor_b32 v17, 0xc0c, v17"); I("v_lshlrev_b32 v17, v32, v17")
    I("v_and_b32 v16, 2, v0")
    I("v_cmp_eq_u32 vcc, 0, v16")
    I("v_cndmask_b32 v12, 0, v17, vcc"); I("v_cndmask_b32 v62, v17, 0, vcc")
    I("v_xor_b32 v12, 0x0c0c0c0c, v12"); I("v_xor_b32 v62, 0x0c0c0c0c, v62")
    I("v_and_b32 v15, 31, v0"); I("v_lshlrev_b32 v15, 1, v15")
    I("s_lshl_b32 s100, s8, 2"); I("v_mov_b32 v16, s100"); I("v_mov_b32 v17, 1")
    I("v_mov_b32 v63, 0xff")
    I(f"s_mov_b32 s26, {f32(SCALE)}")
    a.wait_lgkm(0)
    mktag()
    stamp()
    need("QG")
    poll("L_qg", QG_LD, tagchk2("v20", "v21", ["v28", "v29", "v30", "v31"]), qsleep)
    pack_red(28)
    I("v_cvt_pk_bf16_f32 v28, v28, v28")
    I(f"ds_write_b16 v18, v28 offset:{L_QS}")
    lds_sync("qs", "v16", "v17", 4)
    I(f"ds_read_b128 v[16:19], v61 offset:{L_QS}")
    I("v_mov_b32 v13, v62")
    a.wait_lgkm(0)
    for s in range(4):
        for d in range(4):
            I(f"v_cndmask_b32 v{40+4*s+d}, 0, v{16+d}, s[{16+2*s}:{17+2*s}]")
    def post(GX):
        acc = 24 + 4 * (GX & 1); S = f"v{32+GX}"
        I(f"v_mov_b32_dpp {S}, v{acc} quad_perm:[0,0,0,0] row_mask:0xf bank_mask:0xf")
        for c in (1, 2, 3):
            I(f"v_add_f32_dpp {S}, v{acc+c}, {S} quad_perm:[{c},{c},{c},{c}] row_mask:0xf bank_mask:0xf")
        rne(S, S)
        I(f"v_mul_f32 {S}, s26, {S}")
        rne(S, S)
        if GX == 0: I(f"v_mov_b32 v60, {S}")
        else: I(f"v_max_f32 v60, v60, {S}")
    for GX in range(8):
        acc = 24 + 4 * (GX & 1)
        for s in range(4):
            t = 4 * GX + s
            need(f"K{t}")
            I(f"v_mfma_f32_16x16x32_bf16 v[{acc}:{acc+3}], {KB(t)}, v[{40+4*s}:{43+4*s}], {'0' if s == 0 else f'v[{acc}:{acc+3}]'}")
            if t - vlag >= 0: ready.add(f"V{t-vlag}"); fill()
            if s == 0 and GX > 0: post(GX - 1)
    post(7)
    stamp()
    wave_red("v_max_f32", ["v60"], ["v16"], steps=(8, 4))
    I(f"s_mov_b32 s26, {f32(LOG2E)}")
    for GX in range(8): I(f"v_sub_f32 v{32+GX}, v{32+GX}, v60")
    for GX in range(8): I(f"v_mul_f32 v{32+GX}, s26, v{32+GX}")
    for GX in range(8): I(f"v_exp_f32 v{32+GX}, v{32+GX}")
    I("v_add_f32 v61, v32, v33")
    for GX in range(2, 8): I(f"v_add_f32 v61, v61, v{32+GX}")
    wave_red("v_add_f32", ["v61"], ["v16"], steps=(8, 4))
    I(f"v_or_b32 v60, {TAG}, v60")
    I(f"v_bfi_b32 v61, v63, {TAG}, v61")
    I(f"v_mov_b32 v62, {TAG}"); I(f"v_mov_b32 v63, {TAG}")
    I("v_mov_b32 v16, s99")
    I("s_mov_b64 exec, 1")
    I(f"buffer_store_dwordx4 v[60:63], v16, {WS}, 0 offen sc1", "pubst")
    I("s_mov_b64 exec, -1")
    setprio(2)
    ready.update([f"V{t}" for t in range(32)])
    fill()
    assert qpos[0] == len(order)
    for GX in range(8): I(f"v_cvt_pk_bf16_f32 v{32+GX}, v{32+GX}, v{32+GX}")
    I("v_lshrrev_b32 v16, 5, v0"); I("v_mul_u32_u24 v16, 88, v16"); I("v_bfe_u32 v17, v0, 2, 3"); I("v_add_lshl_u32 v16, v16, v17, 1")
    I("v_bfe_u32 v17, v0, 1, 1"); I("v_add_lshl_u32 v16, v16, v17, 5")
    I("v_and_b32 v17, 1, v0"); I("v_add_lshl_u32 v16, v16, v17, 4")
    I("s_lshr_b32 s100, s2, 4"); I("s_lshl_b32 s100, s100, 13"); I("s_and_b32 s101, s2, 15"); I("s_lshl_b32 s101, s101, 5")
    I("s_add_u32 s100, s100, s101"); I(f"s_add_u32 s100, s100, {WS_F}")
    I("v_add_u32 v47, s100, v16")
    I("v_and_b32 v1, 31, v0"); I("v_lshlrev_b32 v1, 4, v1")
    I("v_lshrrev_b32 v16, 5, v0"); I("v_lshl_add_u32 v1, v16, 14, v1")
    I(f"s_lshl_b32 s100, s6, 9"); I(f"s_add_u32 s100, s100, {WS_ST}"); I("v_add_u32 v1, s100, v1")
    I("s_lshl_b32 s100, s2, 15"); I("s_lshl_b32 s101, s10, 12"); I("s_add_u32 s100, s100, s101")
    I(f"s_add_u32 s100, s100, {WS_Y}")
    I("v_lshl_add_u32 v2, v0, 4, s100")
    I("v_lshrrev_b32 v4, 4, v0"); I("v_lshlrev_b32 v4, 2, v4")
    I("v_mov_b32 v63, 0xff")
    def hl():
        only_if(f"s_cmp_eq_u32 s10, {gw}", "hl")
        a.raw("  " + FG_LD); a.raw("  " + ST_LD)
        end_if("hl")
    if hl_pos < 0: hl()
    def ffn2():
        I("s_cmp_ge_u32 s2, 172")
        I("s_cbranch_scc1 L_fg_ok")
        poll("L_fg", FG_LD, tagchk2("v28", "v29", ["v52", "v53", "v54", "v55"]), hsleep)
        Ar = [f"v{52+k}" for k in range(4)]; T = [f"v{28+k}" for k in range(4)]
        wave_red("v_add_f32", Ar, T, steps=(8, 4), swaps=("v_permlane16_swap_b32",))
        for k in range(4): rne(Ar[k], Ar[k])
        for k in range(4): I(f"v_mov_b32 {T[k]}, {Ar[k]}")
        for k in range(4): I(f"v_permlane32_swap_b32 {Ar[k]}, {T[k]}")
        c1 = -2.0 * 0.7978845608028654 * LOG2E
        seq = [lambda g, t, u: f"v_mul_f32 {t}, {g}, {g}",
               lambda g, t, u: f"v_mul_f32 {t}, {f32(0.044715)}, {t}",
               lambda g, t, u: f"v_fma_f32 {t}, {t}, {g}, {g}",
               lambda g, t, u: f"v_mul_f32 {t}, {f32(c1)}, {t}",
               lambda g, t, u: f"v_exp_f32 {t}, {t}",
               lambda g, t, u: f"v_add_f32 {t}, 1.0, {t}",
               lambda g, t, u: f"v_rcp_f32 {t}, {t}",
               lambda g, t, u: f"v_mul_f32 {t}, {g}, {t}",
               lambda g, t, u: f"v_cvt_pk_bf16_f32 {t}, {t}, {t}",
               lambda g, t, u: f"v_and_b32 {t}, 0xffff0000, {t}",
               lambda g, t, u: f"v_mul_f32 {t}, {t}, {u}"]
        for f in seq:
            for k in range(4): I(f(Ar[k], f"v{40+k}", T[k]))
        I("v_cvt_pk_bf16_f32 v44, v40, v41"); I("v_cvt_pk_bf16_f32 v45, v42, v43")
        I("v_lshlrev_b32 v46, 3, v0")
        I("s_mov_b64 exec, 15")
        I(f"ds_write_b64 v46, v[44:45] offset:{L_H}")
        I("s_mov_b64 exec, -1")
    buildB(16, "v32", 0)
    for t in range(32):
        cur = 16 + 4 * (t & 1); nxt = 16 + 4 * ((t + 1) & 1)
        if t + 1 < 32: buildB(nxt, f"v{32 + ((t+1) >> 2)}", 4 * ((t + 1) & 3))
        need(f"V{t}")
        I(f"v_mfma_f32_16x16x32_bf16 v[24:27], {KB(t)}, v[{cur}:{cur+3}], {'0' if t == 0 else 'v[24:27]'}")
        if t == 0: stamp(True)
        if t == hl_pos: hl()
    I("v_mov_b32 v8, 0")
    I("v_and_b32 v9, 7, v0"); I("v_lshlrev_b32 v9, 6, v9"); I("v_bfe_u32 v10, v0, 4, 1"); I("v_lshl_add_u32 v9, v10, 5, v9")
    I("v_lshrrev_b32 v10, 5, v0"); I("v_lshl_add_u32 v9, v10, 9, v9"); I("s_lshl_b32 s100, s10, 2"); I("v_add_u32 v9, s100, v9")
    stamp()
    for r in range(4):
        I(f"ds_write_b32 v6, v{24+r} offset:{L_OP + 32*r}")
    I("v_lshlrev_b32 v10, 4, v10"); I("v_lshl_add_u32 v10, v15, 4, v10")
    only_if(f"s_cmp_eq_u32 s10, {gw}", "fin")
    I("s_waitcnt vmcnt(0)")
    ffn2()
    poll("L_st", ST_LD, tagchk("v28", ["v48", "v49", "v50", "v51"]), hsleep)
    I("v_and_b32 v48, 0xffff0000, v48")
    I("v_mov_b32 v50, v48")
    wave_red("v_max_f32", ["v50"], ["v51"], swaps=("v_permlane16_swap_b32",))
    I("v_sub_f32 v48, v48, v50"); I("v_mul_f32 v48, s26, v48"); I("v_exp_f32 v48, v48")
    I("v_mul_f32 v51, v48, v49")
    wave_red("v_add_f32", ["v51"], ["v49"], swaps=("v_permlane16_swap_b32",))
    I("v_rcp_f32 v49, v51")
    I("v_mul_f32 v61, v48, v49")
    I("v_fma_f32 v50, -v61, v51, v48"); I("v_fmac_f32 v61, v50, v49")
    I("v_lshrrev_b32 v50, 5, v0"); I("v_and_b32 v51, 3, v0"); I("v_lshl_add_u32 v50, v50, 2, v51"); I("v_lshlrev_b32 v50, 2, v50")
    I("s_lshl_b32 s100, s7, 2"); I("s_lshl_b32 s100, 15, s100")
    I("s_mov_b32 exec_lo, s100"); I("s_mov_b32 exec_hi, s100")
    I(f"ds_write_b32 v50, v61 offset:{L_SC}")
    I("s_mov_b64 exec, -1")
    end_if("fin")
    a.wait_lgkm(0)
    I("s_barrier")
    stamp(True)
    I(f"ds_read_b32 v44, v4 offset:{L_H}")
    I(f"ds_read_b32 v45, v4 offset:{L_H + 16}")
    I(f"ds_read_b128 v[48:51], v8 offset:{L_SC}")
    I(f"ds_read_b128 v[52:55], v8 offset:{L_SC + 16}")
    for sl in range(8):
        dst = (16 if sl < 4 else 32) + 2 * (sl & 3)
        I(f"ds_read_b64 v[{dst}:{dst+1}], v3 offset:{L_OP + 512*sl}")
    def yMFMA(A_, B, first=False):
        I(f"v_mfma_f32_16x16x16_bf16 v[28:31], v[{A_}:{A_+1}], v[{B}:{B+1}], {'0' if first else 'v[28:31]'}")
        I(f"v_mfma_f32_16x16x16_bf16 v[40:43], v[{A_+2}:{A_+3}], v[{B}:{B+1}], {'0' if first else 'v[40:43]'}")
    def selB(dst, s0, s1, n):
        I(f"v_mov_b32_dpp v44, {s0} row_newbcast:{n} row_mask:0xf bank_mask:0xf")
        I(f"v_mov_b32_dpp v45, {s1} row_newbcast:{n} row_mask:0xf bank_mask:0xf")
        for d in range(2):
            I(f"v_perm_b32 v{dst+d}, v45, v44, v{12+d}")
    a.wait_lgkm(10)
    for d in range(2): I(f"v_perm_b32 v{46+d}, v45, v44, v{12+d}")
    a.wait_vm_all()
    yMFMA(56, 46, True)
    a.wait_lgkm(0)
    for q in range(4):
        for k in range(2):
            for b in range(2):
                o = 16 + 16 * b
                if q == 0: I(f"v_mul_f32 v{o+k}, v{48+4*b}, v{o+k}")
                else: I(f"v_fmac_f32 v{o+k}, v{48+4*b+q}, v{o+2*q+k}")
    I("v_cvt_pk_bf16_f32 v60, v16, v17")
    I("v_cvt_pk_bf16_f32 v61, v32, v33")
    selB(16, "v60", "v61", 0)
    for t in range(16):
        cur = 16 + 2 * (t & 1); nxt = 16 + 2 * ((t + 1) & 1)
        if t + 1 < 16: selB(nxt, "v60", "v61", t + 1)
        yMFMA(64 + 4 * t, cur)
    for rr in range(4): I(f"v_permlane32_swap_b32 v{28+rr}, v{40+rr}")
    for k in range(2):
        I(f"v_add_f32_dpp v{16+k}, v{40+2*k}, v{28+2*k} row_ror:8 row_mask:0xf bank_mask:0x3")
        I(f"v_add_f32_dpp v{16+k}, v{29+2*k}, v{41+2*k} row_ror:8 row_mask:0xf bank_mask:0xc")
    for k in range(2): I(f"v_bfi_b32 v{16+k}, v63, {TAG}, v{16+k}")
    I(f"buffer_store_dwordx2 v[16:17], v7, {WS}, 0 offen sc1", "puby")
    stamp()
    EXIT = "L_stamps" if stamps == 2 else "L_end"
    I("s_cmp_ge_u32 s2, 32")
    I(f"s_cbranch_scc1 {'L_stamps' if stamps else 'L_end'}")
    I("s_mov_b32 s101, 0")
    a.raw("L_y_poll:")
    for k in range(4):
        a.raw(f"  buffer_load_dwordx4 v[{16+4*k}:{19+4*k}], v2, {WS}, 0 offen offset:{1024*k} sc1")
    a.raw("  s_add_u32 s101, s101, 1")
    a.raw("  s_waitcnt vmcnt(0)")
    a.vm = []
    for j in range(4):
        for k in range(4):
            a.raw(f"  v_msad_u8 v{32+k}, v{16+4*k+j}, {TAG}, {0 if j == 0 else f'v{32+k}'}")
    a.raw("  v_or3_b32 v32, v32, v33, v34")
    a.raw("  v_or_b32 v32, v32, v35")
    a.raw("  v_cmp_ne_u32 vcc, 0, v32")
    a.raw("  s_cmp_ge_u32 s101, 0x8000")
    a.raw("  s_cbranch_scc1 L_y_ok")
    a.raw("  s_nop 3")
    a.raw("  s_cbranch_vccz L_y_ok")
    a.raw("  s_mov_b64 exec, vcc")
    if poll_sleep: a.raw(f"  s_sleep {poll_sleep}")
    a.raw("  s_branch L_y_poll")
    a.raw("L_y_ok:")
    a.raw("  s_mov_b64 exec, -1")
    for k in range(4):
        I(f"v_add_f32 v{16+k}, v{16+k}, v{20+k}")
        I(f"v_add_f32 v{24+k}, v{24+k}, v{28+k}")
    for k in range(4):
        I(f"v_add_f32 v{16+k}, v{16+k}, v{24+k}")
    pack_red(16)
    I(f"ds_write_b32 v9, v16 offset:{L_Y}")
    a.wait_lgkm(0)
    I("s_barrier")
    I("s_cmp_lg_u32 s10, 0")
    I(f"s_cbranch_scc1 {EXIT}")
    I(f"ds_read_b128 v[16:19], v10 offset:{L_Y}")
    I("v_lshlrev_b32 v14, 16, v14")
    I("s_lshl_b32 s100, s2, 6")
    I(f"v_mov_b32 v21, {TAG}")
    a.wait_lgkm(0)
    I("v_add_f32 v16, v16, v17"); I("v_add_f32 v18, v18, v19"); I("v_add_f32 v16, v16, v18")
    I("v_mov_b32 v17, v16"); I("v_permlane32_swap_b32 v16, v17"); I("v_add_f32 v16, v16, v17")
    I("v_add_f32 v16, v16, v14")
    I("v_cvt_pk_bf16_f32 v16, v16, v16")
    I("s_mov_b32 exec_hi, 0")
    I(f"buffer_store_short v16, v15, {OUT}, s100 offen")
    I("s_cmp_lg_u32 s2, 0")
    I(f"s_cbranch_scc1 {'L_stamps' if stamps else 'L_end'}")
    I("s_mov_b64 exec, 1")
    I(f"s_mov_b32 s100, {WS_EP}")
    I(f"buffer_store_dword v21, off, {WS}, s100 sc1")
    if stamps:
        a.raw("L_stamps:")
        a.wait_vm_all()
        while nstamp[0] < (12 if stamps == 2 else 6): stamp()
        a.wait_lgkm(0)
        I("s_mov_b64 exec, 1")
        n = nstamp[0]
        if stamps == 2:
            I("s_lshl_b32 s2, s2, 3"); I("s_add_u32 s2, s2, s10")
        else:
            I("s_cmp_lg_u32 s10, 0"); I("s_cbranch_scc1 L_end")
        I(f"s_mul_i32 s100, s2, {8*n}"); I(f"s_add_u32 s100, s100, {WS_STAMP}"); I("v_mov_b32 v18, s100")
        for k in range(n):
            I(f"v_mov_b32 v16, s{SREG[k]}"); I(f"v_mov_b32 v17, s{SREG[k]+1}")
            I(f"buffer_store_dwordx2 v[16:17], v18, {WS}, 0 offen offset:{8*k}")
            I("s_nop 1")
    a.raw("L_end:")
    I("s_endpgm")
    body = a.text()
    desc = lambda name, nv, ns: f""".amdhsa_kernel {name}
  .amdhsa_next_free_vgpr {nv}
  .amdhsa_next_free_sgpr {ns}
  .amdhsa_accum_offset {nv}
  .amdhsa_group_segment_fixed_size 0
  .amdhsa_kernarg_size 96
  .amdhsa_user_sgpr_count 2
  .amdhsa_user_sgpr_kernarg_segment_ptr 1
  .amdhsa_system_sgpr_workgroup_id_x 1
  .amdhsa_float_denorm_mode_32 3
.end_amdhsa_kernel
"""
    out = HEADER
    out += f"; @launch grid=(256,1,1) block=(512,1,1) lds={LDS_BYTES}\n"
    out += f'.amdgcn_target "amdgcn-amd-amdhsa--gfx950"\n.text\n.globl {NAME}_kernel\n.p2align 8\n.type {NAME}_kernel,@function\n'
    out += body
    out += '.section .rodata,"a"\n.p2align 6\n' + desc(NAME + "_kernel", 256, 102)
    sys.stderr.write(f"maxvm {a.maxvm} nops {a.nops} lines {len(a.lines)}\n")
    return out

if __name__ == "__main__":
    import ast
    fn = sys.argv[1]
    kw = {}
    for x in sys.argv[2:]:
        k, v = x.split("=", 1)
        try: kw[k] = ast.literal_eval(v)
        except Exception: kw[k] = v
    open(fn, "w").write(gen(**kw))
```

```python
import re

def _regs(tok):
    tok = tok.strip()
    tok = re.sub(r"^(-|abs\(|neg\()+", "", tok).rstrip(")")
    tok = tok.strip("|")
    m = re.fullmatch(r"([vsa])\[(\d+):(\d+)\]", tok)
    if m:
        return [(m.group(1), i) for i in range(int(m.group(2)), int(m.group(3)) + 1)]
    m = re.fullmatch(r"([vsa])(\d+)", tok)
    if m:
        return [(m.group(1), int(m.group(2)))]
    if tok in ("vcc", "vcc_lo", "vcc_hi"):
        return [("s", 106), ("s", 107)]
    if tok in ("exec", "exec_lo", "exec_hi"):
        return [("s", 126), ("s", 127)]
    if tok == "m0":
        return [("s", 124)]
    return []

TRANS = ("v_exp_f32", "v_log_f32", "v_rcp_f32", "v_rsq_f32", "v_sqrt_f32", "v_sin_f32", "v_cos_f32", "v_rcp_iflag_f32")

class Asm:
    def __init__(self):
        self.lines = []
        self.t = 0
        self.wr = {}
        self.mfma_c_rd = {}
        self.store_rd = {}
        self.vm = []
        self.vm_done = set()
        self.maxvm = 0
        self.nops = 0

    def raw(self, s):
        self.lines.append(s)

    def comment(self, s):
        self.lines.append("  ; " + s)

    def label(self, name):
        self.lines.append(name + ":")

    def skip_begin(self):
        return self.t

    def skip_end(self, t0):
        d = self.t - t0
        for r, w in list(self.wr.items()):
            if w[0] <= t0: self.wr[r] = (w[0] + d,) + tuple(w[1:])
        for r, c in list(self.mfma_c_rd.items()):
            if c[0] <= t0: self.mfma_c_rd[r] = (c[0] + d, c[1])
        for r, c in list(self.store_rd.items()):
            if c <= t0: self.store_rd[r] = c + d

    def flush_hazards(self):
        self._nop(18)

    def _nop(self, n):
        while n > 0:
            k = min(n, 16)
            self.lines.append(f"  s_nop {k-1}")
            self.t += k
            self.nops += k
            n -= k

    def I(self, text, tag=None):
        text = text.strip()
        mn, _, rest = text.partition(" ")
        ops = []
        depth = 0; cur = ""
        for ch in rest:
            if ch == "[": depth += 1
            if ch == "]": depth -= 1
            if ch == "," and depth == 0:
                ops.append(cur.strip()); cur = ""
            else:
                cur += ch
        if cur.strip():
            ops.append(cur.strip())
        mods = ""
        if ops:
            last = ops[-1].split()
            if len(last) > 1:
                ops[-1] = last[0]; mods = " ".join(last[1:])
        R = [_regs(o) for o in ops]
        reads, writes = [], []
        kind = None
        is_dpp = ("_dpp" in mn) or ("row_" in mods) or ("quad_perm" in mods) or ("wave_" in mods)
        need = 0
        def dist(reg):
            w = self.wr.get(reg)
            return (w, (self.t - w[0]) if w else 10**9)
        if mn.startswith("v_mfma"):
            passes = 8 if "32x32" in mn else 4
            kind = f"mfma{passes}"
            writes = R[0]; A, B, C = R[1], R[2], R[3]
            for r in A + B + C:
                w, d = dist(r)
                if w and w[1] in ("valu", "trans"):
                    need = max(need, 2 - d)
            for r in A + B:
                w, d = dist(r)
                if w and w[1].startswith("mfma"):
                    need = max(need, (8 if w[1] == "mfma4" else 12) - d)
            for r in C:
                w, d = dist(r)
                if w and w[1].startswith("mfma"):
                    if not (w[2] == tuple(C) and w[1] == kind):
                        need = max(need, (6 if w[1] == "mfma4" else 10) - d)
            for r in writes:
                w, d = dist(r)
                if w and w[1].startswith("mfma") and not (w[2] == tuple(writes)):
                    need = max(need, (8 if w[1] == "mfma4" else 12) - d)
            w, d = dist(("s", 126))
            if w and w[1] == "valu": need = max(need, 4 - d)
            reads = A + B + C
        elif mn.startswith("v_"):
            kind = "trans" if any(mn.startswith(t) for t in TRANS) else "valu"
            if mn.startswith("v_permlane") and "swap" in mn:
                writes = R[0] + R[1]; reads = R[0] + R[1]
                for r in reads:
                    w, d = dist(r)
                    if w and w[1] in ("valu", "trans"): need = max(need, 2 - d)
            elif mn.startswith("v_cmp"):
                writes = R[0]; reads = sum(R[1:], [])
            elif mn.startswith("v_readlane") or mn.startswith("v_readfirstlane"):
                writes = R[0]; reads = sum(R[1:], [])
                for r in R[1]:
                    w, d = dist(r)
                    if w and w[1] in ("valu", "trans"): need = max(need, 1 - d)
                if len(R) > 2:
                    for r in R[2]:
                        w, d = dist(r)
                        if w and w[1] in ("valu", "trans"): need = max(need, 4 - d)
            else:
                writes = R[0]; reads = sum(R[1:], [])
                if mn.startswith("v_fmac") or mn.startswith("v_dot2c") or is_dpp:
                    reads = reads + R[0]
                if mn.startswith("v_cndmask") and len(ops) == 3:
                    reads = reads + [("s", 106), ("s", 107)]
                if "_co_" in mn:
                    raise Exception("avoid carry ops in asmlib")
            for r in reads:
                w, d = dist(r)
                if not w: continue
                if r[0] == "s" and w[1] in ("valu", "trans"):
                    need = max(need, 2 - d)
                if w[1] == "trans" and kind != "trans":
                    need = max(need, 1 - d)
                if w[1].startswith("mfma"):
                    need = max(need, (8 if w[1] == "mfma4" else 12) - d)
            if is_dpp:
                for r in R[1]:
                    w, d = dist(r)
                    if w and w[1] in ("valu", "trans"): need = max(need, 2 - d)
            for r in writes:
                w, d = dist(r)
                if w and w[1].startswith("mfma"):
                    need = max(need, (8 if w[1] == "mfma4" else 12) - d)
                c = self.mfma_c_rd.get(r)
                if c: need = max(need, (3 if c[1] == 4 else 7) - (self.t - c[0]))
                sr = self.store_rd.get(r)
                if sr is not None: need = max(need, 2 - (self.t - sr))
        elif mn.startswith("buffer_") or mn.startswith("global_") or mn.startswith("ds_"):
            kind = "mem"
            is_load = ("load" in mn) or mn.startswith("ds_read") or mn.startswith("ds_bpermute") or mn.startswith("ds_swizzle") or ("_rtn_" in mn)
            if "lds" in mods.split():
                reads = sum(R, [])
                w, d = dist(("s", 124))
                if w and w[1] == "salu": need = max(need, 1 - d)
            elif is_load:
                writes = R[0]; reads = sum(R[1:], [])
            else:
                reads = sum(R, [])
                if "atomic" in mn and "sc0" in mods: writes = R[0]
            for r in reads:
                w, d = dist(r)
                if not w: continue
                if r[0] == "s" and w[1] in ("valu", "trans"): need = max(need, 5 - d)
                if w[1].startswith("mfma"): need = max(need, (8 if w[1] == "mfma4" else 12) - d)
            for r in writes:
                w, d = dist(r)
                if w and w[1].startswith("mfma"): need = max(need, (8 if w[1] == "mfma4" else 12) - d)
                sr = self.store_rd.get(r)
                if sr is not None: need = max(need, 1 - (self.t - sr))
        elif mn.startswith("s_"):
            kind = "salu"
            if mn in ("s_nop",):
                n = int(ops[0], 0) + 1
                self.lines.append("  " + text); self.t += n
                return
            if mn.startswith("s_cmp") or mn.startswith("s_cbranch") or mn in ("s_branch", "s_barrier", "s_waitcnt", "s_endpgm", "s_sleep", "s_setprio", "s_bitcmp1_b32", "s_bitcmp0_b32"):
                reads = sum(R, [])
            else:
                writes = R[0] if R else []
                reads = sum(R[1:], [])
                if "saveexec" in mn: writes = writes + [("s", 126), ("s", 127)]
            for r in reads:
                w, d = dist(r)
                if w and w[1] in ("valu", "trans"): need = max(need, 1 - d)
            if mn.startswith("s_cbranch_vcc"):
                w, d = dist(("s", 106))
                if w and w[1] in ("valu", "trans"): need = max(need, 5 - d)
        else:
            raise Exception("unknown instr " + text)
        if need > 0:
            self._nop(need)
        self.lines.append("  " + text)
        now = self.t
        for r in writes:
            if kind.startswith("mfma"):
                self.wr[r] = (now + 1, kind, tuple(writes))
            elif kind == "mem":
                self.wr.pop(r, None)
            else:
                self.wr[r] = (now + 1, kind, None)
        if kind.startswith("mfma"):
            for r in R[3]:
                self.mfma_c_rd[r] = (now + 1, int(kind[4:]))
        if kind == "mem" and not (("load" in mn) or mn.startswith("ds_")) and ("x3" in mn or "x4" in mn):
            for r in R[0]:
                self.store_rd[r] = now + 1
        self.t += 1
        if mn.startswith("buffer_") or mn.startswith("global_"):
            self.vm.append(tag if tag is not None else f"_anon{len(self.lines)}")
            self.maxvm = max(self.maxvm, len(self.vm))
            assert len(self.vm) <= 63, "too many outstanding vmem"

    def wait_vm(self, tag):
        if tag in self.vm_done:
            return
        assert tag in self.vm, tag
        i = self.vm.index(tag)
        n = len(self.vm) - 1 - i
        self.I(f"s_waitcnt vmcnt({n})")
        for x in self.vm[: i + 1]:
            self.vm_done.add(x)
        self.vm = self.vm[i + 1:]

    def wait_vm_all(self):
        self.I("s_waitcnt vmcnt(0)")
        for x in self.vm: self.vm_done.add(x)
        self.vm = []

    def wait_lgkm(self, n=0):
        self.I(f"s_waitcnt lgkmcnt({n})")

    def text(self):
        return "\n".join(self.lines) + "\n"
```

```python
import sys, struct
from asmlib import Asm
NAME = "parallel_sum__mha_block_cached__geglu_ffn__decode"
HEADER = open("cdna_kernels/" + NAME + ".s.ref").read().split("; Override launch")[0]

def f32(x):
    return "0x%08x" % struct.unpack("<I", struct.pack("<f", x))[0]

WS_ST, WS_Q, WS_F, WS_EP, WS_Y = 0x100000, 0x110000, 0x140000, 0x0, 0x200000
WS_STAMP = 0x8000000
L_QP, L_FP, L_CNT, L_H, L_SC, L_Z, L_QS, L_OP, L_Y = 0, 4096, 8192, 8224, 8256, 8320, 8448, 9216, 11520
OPS = 288
L_W, WREG = 12544, 18432
LDS_BYTES = L_W + 8 * WREG
LOG2E = 1.4426950408889634
SCALE = 128 ** -0.5

def gen(kf="nt", vf="nt", wf="", stamps=False, poll_sleep=0, prio=(3, 1, 0), hsleep=32, qsleep=8,
        cC=(16, 6, 16, 5, 16, 6, 16, 5), cP=(11, 10, 11, 11, 11, 10, 11, 11), epos=12, codd=1, G=32, wk=(),
        wv=(0, 2, 3, 5, 6, 8, 9, 11, 12, 14, 15, 17, 18, 20, 21, 23), pm=24, dv=(1, 4), lay=10, exp="", kb=3, cpos=15, fhp=12, NS=3, psl=4, cmap='even', wsc=1, ot=0, touch=0, p0=0):
    global WS_ST, WS_Q, WS_F, WS_Y
    if wsc: WS_ST, WS_Q, WS_F, WS_Y = 0x10000, 0x20000, 0x40000, 0x80000
    assert all(w >= cpos for w in wk) and G > cpos
    a = Asm()
    I = a.I
    nstamp = [0]
    SREG = [84, 86, 88, 90, 92, 94, 28, 30, 32, 34, 36, 38]
    def stamp(fine=False):
        if stamps and (not fine or stamps == 2):
            k = nstamp[0]; nstamp[0] += 1
            I(f"s_memrealtime s[{SREG[k]}:{SREG[k]+1}]")
    def rne(d, s):
        I(f"v_cvt_pk_bf16_f32 {d}, {s}, {s}")
        I(f"v_and_b32 {d}, 0xffff0000, {d}")
    def wave_red(op, regs, tmps, steps=(8, 4, 2, 1), swaps=("v_permlane16_swap_b32", "v_permlane32_swap_b32")):
        for st in steps:
            for r in regs:
                I(f"{op}_dpp {r}, {r}, {r} row_ror:{st} row_mask:0xf bank_mask:0xf")
        for sw_ in swaps:
            for r, t in zip(regs, tmps):
                I(f"v_mov_b32 {t}, {r}")
            for r, t in zip(regs, tmps):
                I(f"{sw_} {r}, {t}")
            for r, t in zip(regs, tmps):
                I(f"{op} {r}, {r}, {t}")
    def pack_red(r):
        I(f"v_permlane32_swap_b32 v{r}, v{r+1}"); I(f"v_permlane32_swap_b32 v{r+2}, v{r+3}")
        I(f"v_add_f32 v{r}, v{r}, v{r+1}"); I(f"v_add_f32 v{r+2}, v{r+2}, v{r+3}")
        I(f"v_permlane16_swap_b32 v{r}, v{r+2}")
        I(f"v_add_f32 v{r}, v{r}, v{r+2}")
        I(f"v_add_f32_dpp v{r}, v{r}, v{r} row_ror:8 row_mask:0xf bank_mask:0xf")
    def srd(base, lo, hi, off, size):
        if off is None:
            I(f"s_mov_b32 s{base}, s{lo}"); I(f"s_mov_b32 s{base+1}, s{hi}")
        else:
            I(f"s_add_u32 s{base}, s{lo}, {off}"); I(f"s_addc_u32 s{base+1}, s{hi}, 0")
        I(f"s_mov_b32 s{base+2}, {size}")
        I(f"s_mov_b32 s{base+3}, 0x20000")
    def setprio(k):
        if prio: I(f"s_setprio {prio[k]}")
    X, K, V, WQ, WO, WG, WU, WD, WS, _U, OUT = [f"s[{40+4*i}:{43+4*i}]" for i in range(11)]
    TAG = "s76"
    KB = lambda t: f"v[{128+4*t}:{131+4*t}]"
    def tagchk(t0, t1, regs, mask):
        return [f"v_bitop3_b32 {t0}, {regs[0]}, {regs[1]}, {TAG} bitop3:0x7e",
                f"v_bitop3_b32 {t1}, {regs[2]}, {regs[3]}, {TAG} bitop3:0x7e",
                f"v_or_b32 {t0}, {t0}, {t1}", f"v_and_b32 {t0}, {mask}, {t0}", f"v_cmp_ne_u32 vcc, 0, {t0}"]
    def poll(label, load, check, sleep):
        for c in check: I(c)
        I(f"s_cbranch_vccz {label}_ok")
        I("s_mov_b32 s101, 0")
        a.raw(f"{label}_poll:")
        a.raw(f"  s_sleep {sleep}")
        for l_ in load: a.raw("  " + l_)
        a.raw("  s_waitcnt vmcnt(0)")
        for c in check: a.raw("  " + c)
        a.raw("  s_add_u32 s101, s101, 1")
        a.raw("  s_cmp_ge_u32 s101, 0x4000")
        a.raw(f"  s_cbranch_scc1 {label}_ok")
        a.raw("  s_nop 4")
        a.raw(f"  s_cbranch_vccnz {label}_poll")
        a.raw(f"{label}_ok:")
        a.raw("  s_nop 1")
    sk = []
    def only_if(cond, name):
        I(cond); I(f"s_cbranch_scc0 L_sk_{name}"); sk.append(a.skip_begin())
    def end_if(name):
        a.raw(f"L_sk_{name}:"); a.skip_end(sk.pop())
    def lds_wait(name, off, n, vt="v17", vz="v16"):
        I("s_mov_b32 s101, 0")
        a.raw(f"L_{name}:")
        a.raw(f"  ds_read_b32 {vt}, {vz} offset:{L_CNT + off}")
        a.raw("  s_add_u32 s101, s101, 1")
        a.raw("  s_cmp_ge_u32 s101, 0x40000")
        a.raw(f"  s_cbranch_scc1 L_{name}_ok")
        a.raw("  s_waitcnt lgkmcnt(0)")
        a.raw(f"  v_readfirstlane_b32 s4, {vt}")
        a.raw("  s_nop 0")
        a.raw(f"  s_cmp_lt_u32 s4, {n}")
        a.raw(f"  s_cbranch_scc0 L_{name}_ok")
        a.raw("  s_sleep 1")
        a.raw(f"  s_branch L_{name}")
        a.raw(f"L_{name}_ok:")
    def lds_add(off, vone, vz="v16", rtn=None):
        I("s_mov_b64 exec, 1")
        if rtn: I(f"ds_add_rtn_u32 {rtn}, {vz}, {vone} offset:{L_CNT + off}")
        else: I(f"ds_add_u32 {vz}, {vone} offset:{L_CNT + off}")
        I("s_mov_b64 exec, -1")
    def mktag():
        I("s_add_u32 s76, s77, 1"); I("s_and_b32 s76, s76, 0xffff")
    need = a.wait_vm
    QG_LD = [f"buffer_load_dwordx4 v[{112+4*k}:{115+4*k}], v13, {WS}, 0 offen offset:{2048*k} sc1" for k in range(2)]
    FG_LD = [f"buffer_load_dwordx4 v[112:115], v13, {WS}, 0 offen sc1"]
    ST_LD = [f"buffer_load_dwordx4 v[56:59], v1, {WS}, 0 offen sc1"]
    def ldK(t):
        if t % 4 == 0 and t: I(f"s_mov_b32 s27, {(t >> 2) * 16384}")
        I(f"buffer_load_dwordx4 {KB(t)}, v1, {K}, {'s27' if t >= 4 else '0'} offen offset:{(t & 3) * 1024} {kf}", f"K{t}")
    def ldV(t):
        if t % 4 == 0 and t: I(f"s_mov_b32 s27, {(t >> 2) * 16384}")
        I(f"buffer_load_dwordx4 {KB(t)}, v2, {V}, {'s27' if t >= 4 else '0'} offen offset:{(t & 1) * 1024 + ((t >> 1) & 1) * 512} {vf}", f"V{t}")
    def so_of(u):
        return (u >> 2) * 32768 + ((u >> 1) & 1) * 1024 + (u & 1) * 4096
    def ldO(u):
        I(f"s_xor_b32 s4, s98, {u*1024}"); I("s_add_u32 m0, s4, s96"); I(f"s_xor_b32 s4, s97, {so_of(u)}")
        I(f"buffer_load_dwordx4 v4, {WO}, s4 offen {wf} lds", f"O{u}")
    def ldD(u):
        I(f"s_add_u32 m0, s96, {16384 + 1024*u}"); I(f"s_mov_b32 s4, {16384*u}")
        I(f"buffer_load_dwordx4 v5, {WD}, s4 offen {wf} lds", f"D{u}")

    a.raw(f"{NAME}_kernel:")
    stamp()
    I("s_cmp_ge_u32 s2, 256")
    I("s_cbranch_scc1 L_end")
    I("s_load_dwordx16 s[16:31], s[0:1], 0")
    I("s_load_dwordx8 s[32:39], s[0:1], 64")
    setprio(0)
    I("v_lshrrev_b32 v1, 6, v0")
    I("v_and_b32 v0, 63, v0")
    for k in range(4): I(f"v_mov_b32 v{16+k}, 0")
    I("v_readfirstlane_b32 s10, v1")
    I("v_lshlrev_b32 v20, 4, v0")
    I(f"ds_write_b128 v20, v[16:19] offset:{L_CNT}")
    I("s_and_b32 s3, s2, 7")
    I("s_lshr_b32 s13, s2, 6")
    I("s_bfe_u32 s12, s2, 0x30003")
    I("s_lshr_b32 s8, s12, 2"); I("s_and_b32 s7, s12, 3")
    I("s_lshl_b32 s6, s3, 2"); I("s_add_u32 s6, s6, s13")
    I("s_lshl_b32 s11, s8, 5"); I("s_add_u32 s11, s11, s6")
    I("s_and_b32 s9, s10, 3")
    I("v_lshrrev_b32 v9, 4, v0"); I("v_lshrrev_b32 v10, 5, v0"); I("v_bfe_u32 v3, v0, 3, 1")
    I("v_and_b32 v11, 1, v9"); I("v_and_b32 v6, 7, v0")
    I("s_lshr_b32 s4, s10, 2")
    if lay == 10: I("s_xor_b32 s4, s4, s8")
    I("s_lshl_b32 s4, s4, 17"); I("s_lshl_b32 s5, s9, 12"); I("s_add_u32 s78, s4, s5")
    I("v_lshl_add_u32 v1, v6, 4, s78"); I("v_lshl_add_u32 v1, v11, 7, v1")
    I("v_lshl_add_u32 v1, v3, 8, v1"); I("v_lshl_add_u32 v1, v10, 9, v1")
    I("s_lshl_b32 s100, s11, 20"); I("s_lshl_b32 s101, s7, 18"); I("s_add_u32 s100, s100, s101")
    I("v_lshlrev_b32 v14, 5, v0")
    I("s_lshl_b32 s4, s9, 5"); I("v_lshl_add_u32 v5, v9, 3, s4")
    I("v_add_lshl_u32 v4, v5, v3, 13"); I("v_lshl_add_u32 v4, v6, 4, v4")
    I("s_lshl_b32 s98, s7, 20"); I("s_lshl_b32 s99, s6, 8"); I("s_add_u32 s98, s98, s99")
    I("s_lshl_b32 s99, s8, 7"); I("s_add_u32 s98, s98, s99"); I("s_sub_u32 s99, 0x400000, s98")
    I("s_mov_b32 s4, 16384"); I("s_mov_b32 s5, 32768"); I("s_mov_b32 s14, 49152")
    I("s_mov_b32 s46, 262144"); I("s_mov_b32 s47, 0x20000")
    I("s_mov_b32 s42, 2048"); I("s_mov_b32 s43, 0x20000"); I("s_mov_b32 s54, s99"); I("s_mov_b32 s55, 0x20000")
    if stamps == 2:
        for k in (2, 3): a.raw(f"  s_memrealtime s[{SREG[k]}:{SREG[k]+1}]")
    a.wait_lgkm(0)
    if stamps == 2: a.raw(f"  s_memrealtime s[{SREG[1]}:{SREG[1]+1}]")
    I("s_add_u32 s44, s18, s100"); I("s_addc_u32 s45, s19, 0")
    I("s_mov_b32 s40, s16"); I("s_mov_b32 s41, s17")
    I("s_cmp_lt_u32 s10, 4")
    I("s_cbranch_scc1 L_burst")
    tpro = a.skip_begin()
    I(f"buffer_load_dwordx4 v[40:43], v14, {X}, 0 offen", "xr0")
    I(f"buffer_load_dwordx4 v[44:47], v14, {X}, 0 offen offset:16", "xr1")
    I("s_add_u32 s52, s22, s98"); I("s_addc_u32 s53, s23, 0")
    for t in range(4):
        I(f"buffer_load_dwordx4 v[{64+4*t}:{67+4*t}], v4, {WQ}, {('0', 's4', 's5', 's14')[t]} offen {wf}", f"Q{t}")
    I(f"s_load_dword s77, s[38:39], {WS_EP}")
    I("s_barrier")
    I("s_branch L_pro")
    main_lines = a.lines; a.lines = []
    a.raw("L_pro:")
    pk = lambda L: (sum(v << (8 * i) for i, v in enumerate(L[:4])), sum(v << (8 * i) for i, v in enumerate(L[4:])))
    def table(dst, L):
        I(f"s_mov_b32 s{dst}, {pk(L)[0]:#x}"); I(f"s_mov_b32 s{dst+1}, {pk(L)[1]:#x}"); I(f"s_lshr_b64 s[{dst}:{dst+1}], s[{dst}:{dst+1}], s4")
        I(f"s_and_b32 s{dst}, s{dst}, 0xff")
    assert sum(cP) in (0, 86) and sum(cC) in (0, 86) and max(cP + cC) <= 16
    I("s_lshl_b32 s4, s3, 3")
    table(14, [sum(cP[:i]) + cP[i] for i in range(8)]); table(98, [16 - c for c in cP])
    I("s_lshl_b32 s5, s13, 2"); I("s_add_u32 s5, s5, s7")
    I("s_add_u32 s14, s14, s5"); I("s_sub_u32 s14, s14, 16"); I("s_lshl_b32 s14, s14, 1"); I("s_add_u32 s14, s14, s8")
    I("s_cmp_ge_u32 s5, s98"); I("s_cselect_b32 s79, 1, 0"); I("s_cselect_b32 s14, s14, 0")
    I("s_and_b32 s15, s14, 3"); I("s_lshr_b32 s14, s14, 2")
    I("s_mul_i32 s97, s15, 352256"); I("s_lshl_b32 s4, s14, 7"); I("s_add_u32 s97, s97, s4")
    I("s_sub_u32 s101, 1409024, s97"); I("s_mul_i32 s101, s101, s79")
    I("v_lshl_add_u32 v7, v3, 1, v5"); I("v_mul_u32_u24 v7, 2752, v7"); I("v_lshl_add_u32 v7, v6, 4, v7")
    srd(60, 28, 29, "s97", "s101"); srd(64, 30, 31, "s97", "s101")
    I("s_mov_b32 s4, 11008")
    for k in range(4):
        I(f"buffer_load_dwordx4 v[{80+4*k}:{83+4*k}], v7, {(WG, WU)[k >> 1]}, {('0', 's4')[k & 1]} offen {wf}", f"F{k}")
    def masks(dst, jj):
        I(f"v_and_b32 v32, 1, {jj}"); I("v_lshlrev_b32 v32, 4, v32")
        I("v_mov_b32 v33, 0xffff"); I("v_lshlrev_b32 v33, v32, v33")
        I(f"v_bfe_u32 v35, {jj}, 1, 2")
        for d in range(4):
            I(f"v_cmp_eq_u32 vcc, {d}, v35")
            I(f"v_cndmask_b32 v{dst+d}, 0, v33, vcc")
    def vccm(lo, hi=None):
        I(f"s_mov_b32 vcc_lo, {lo:#x}"); I(f"s_mov_b32 vcc_hi, {(lo if hi is None else hi):#x}")
    I("s_lshl_b32 s4, s7, 8"); I("v_lshl_add_u32 v13, v5, 1, s4")
    I("s_lshl_b32 s4, s15, 8"); I("v_lshl_add_u32 v7, v5, 1, s4")
    srd(72, 38, 39, None, 0x10000000)
    masks(128, "v0")
    LO, HI = 0x01000c0c, 0x03020c0c
    vccm(0xff00ff00)
    I(f"v_mov_b32 v32, {LO:#x}"); I(f"v_mov_b32 v33, {HI:#x}")
    I("v_cndmask_b32 v96, v32, v33, vcc"); I("v_cndmask_b32 v97, v33, v32, vcc")
    I("s_lshl_b32 s4, s9, 10")
    I("v_xor_b32 v32, v3, v10"); I("v_lshl_add_u32 v102, v6, 4, s4"); I("v_lshl_add_u32 v102, v11, 7, v102")
    I("v_lshl_add_u32 v102, v32, 8, v102"); I("v_lshl_add_u32 v102, v10, 9, v102")
    I("s_lshl_b32 s4, s6, 3"); I("s_add_u32 s4, s4, s12"); I("s_lshl_b32 s4, s4, 9"); I(f"s_add_u32 s4, s4, {WS_Q}")
    I("v_and_b32 v32, 15, v0"); I("v_lshl_add_u32 v100, v32, 3, s4"); I("v_lshl_add_u32 v100, v10, 7, v100"); I("v_lshl_add_u32 v100, v11, 8, v100")
    I("v_mov_b32 v104, 0"); I("v_mov_b32 v105, 1"); I("v_lshlrev_b32 v106, 4, v0")
    need("xr1")
    stamp(True)
    for k in range(2): I(f"ds_write_b128 v14, v[{40+4*k}:{43+4*k}] offset:{L_OP + 16*k}")
    for b in range(2): I(f"ds_read_b128 v[{48+4*b}:{51+4*b}], v13 offset:{L_OP + 1024*b}")
    for b in range(2): I(f"ds_read_b128 v[{56+4*b}:{59+4*b}], v7 offset:{L_OP + 1024*b}")
    for k in range(8):
        I(f"v_lshlrev_b32 v{16+2*k}, 16, v{40+k}")
        I(f"v_and_b32 v{17+2*k}, 0xffff0000, v{40+k}")
    for k in range(8):
        I(f"v_add_f32 v{32+k}, v{16+2*k}, v{17+2*k}")
    for h in (4, 2, 1):
        for k in range(h):
            I(f"v_add_f32 v{32+k}, v{32+k}, v{32+h+k}")
    wave_red("v_add_f32", ["v32"], ["v33"], swaps=("v_permlane16_swap_b32",))
    I(f"v_mul_f32 v32, {f32(1/512)}, v32")
    for k in range(16):
        I(f"v_sub_f32 v{16+k}, v{16+k}, v32")
    I("v_mul_f32 v34, v16, v16"); I("v_mul_f32 v35, v17, v17")
    for k in range(2, 16):
        I(f"v_fmac_f32 v{34+(k&1)}, v{16+k}, v{16+k}")
    I("v_add_f32 v34, v34, v35")
    rne("v32", "v32")
    a.wait_lgkm(0)
    mktag()
    red = [f"v_add_f32_dpp v34, v34, v34 row_ror:{st} row_mask:0xf bank_mask:0xf" for st in (8, 4, 2, 1)]
    red += ["v_mov_b32 v35, v34", "v_permlane16_swap_b32 v34, v35", "v_add_f32 v34, v34, v35", f"v_mul_f32 v34, {f32(1/512)}, v34",
            "v_cvt_pk_bf16_f32 v34, v34, v34", "v_and_b32 v34, 0xffff0000, v34", f"v_add_f32 v34, {f32(1e-5)}, v34",
            "v_cvt_pk_bf16_f32 v34, v34, v34", "v_and_b32 v34, 0xffff0000, v34", "v_sqrt_f32 v34, v34",
            "v_cvt_pk_bf16_f32 v34, v34, v34", "v_and_b32 v34, 0xffff0000, v34", "v_rcp_f32 v34, v34",
            "v_mov_b32 v35, v34", "v_permlane32_swap_b32 v34, v35"]
    oth = ["v_mov_b32 v33, v32"] + [f"v_perm_b32 v{40+k}, v{48+k}, v{48+k}, v{96+(k>>2)}" for k in range(2)] + ["v_permlane32_swap_b32 v32, v33"]
    oth += [f"v_perm_b32 v{40+k}, v{48+k}, v{48+k}, v{96+(k>>2)}" for k in range(2, 8)]
    oth += [f"v_sub_f32 v{40+k}, v{40+k}, v{32+(k>>2)}" for k in range(8)]
    oth += [f"v_cvt_pk_bf16_f32 v{36+k}, v{40+2*k}, v{41+2*k}" for k in range(4)]
    for k in range(4): oth += [f"v_lshlrev_b32 v{40+2*k}, 16, v{36+k}", f"v_and_b32 v{41+2*k}, 0xffff0000, v{36+k}"]
    for k, r_ in enumerate(red):
        I(r_)
        for _ in range(2 if (k < 5 or k >= 13) else 1):
            if oth: I(oth.pop(0))
    while oth: I(oth.pop(0))
    I("s_or_b32 s4, s76, 0x10000"); I("v_mov_b32 v107, s4")
    I(f"ds_write_b32 v104, v107 offset:{L_CNT + 16}")
    for k in range(8): I(f"v_mul_f32 v{40+k}, v{40+k}, v{34+(k>>2)}")
    for k in range(8): I(f"v_cvt_pk_bf16_f32 v{40+k}, v{40+k}, v{40+k}")
    for t in range(4):
        for b in range(2):
            for d in range(4): I(f"v_and_b32 v{132+8*t+4*b+d}, v{40+4*b+t}, v{128+d}")
        if t:
            need(f"Q{t-1}")
            for b in range(2):
                B = 132 + 8 * (t - 1) + 4 * b; D = f"v[{16+4*b}:{19+4*b}]"
                I(f"v_mfma_f32_16x16x32_bf16 {D}, v[{60+4*t}:{63+4*t}], v[{B}:{B+3}], {'0' if t == 1 else D}")
    need("Q3")
    for b in range(2):
        I(f"v_mfma_f32_16x16x32_bf16 v[{16+4*b}:{19+4*b}], v[76:79], v[{156+4*b}:{159+4*b}], v[{16+4*b}:{19+4*b}]")
    vccm(0xff00ff00, 0x00ff00ff)
    for j in range(4): I(f"v_cndmask_b32 v{16+j}, v{16+j}, v{20+j}, vcc")
    I(f"ds_write_b128 v102, v[16:19] offset:{L_QP}")
    stamp(True)
    a.wait_lgkm(0)
    lds_add(0, "v105", "v104", rtn="v107")
    a.wait_lgkm(0)
    I("v_readfirstlane_b32 s4, v107")
    def sum4(r):
        for j in range(4): I(f"v_add_f32 v{r+j}, v{r+j}, v{r+4+j}")
        for j in range(4): I(f"v_add_f32 v{r+8+j}, v{r+8+j}, v{r+12+j}")
        for j in range(4): I(f"v_add_f32 v{r+j}, v{r+j}, v{r+8+j}")
    only_if("s_cmp_eq_u32 s4, 3", "qp")
    for k in range(4): I(f"ds_read_b128 v[{16+4*k}:{19+4*k}], v106 offset:{L_QP + 1024*k}")
    a.wait_lgkm(0)
    sum4(16)
    I("v_permlane32_swap_b32 v16, v17"); I("v_permlane32_swap_b32 v18, v19")
    I("v_add_f32 v16, v16, v17"); I("v_add_f32 v17, v18, v19")
    for k in range(2): I(f"v_bfi_b32 v{16+k}, 3, {TAG}, v{16+k}")
    if 'Q' not in exp: a.raw(f"  buffer_store_dwordx2 v[16:17], v100, {WS}, 0 offen sc1")
    end_if("qp")
    stamp(True)
    I("s_cmp_eq_u32 s79, 0")
    I("s_cbranch_scc1 L_burst")
    I("s_cmp_ge_u32 s14, 22"); I("s_cselect_b32 s4, 1, 0")
    I("s_cmp_ge_u32 s14, 21"); I("s_cselect_b32 s5, 1, 0")
    I("s_mul_i32 s26, s4, 0x02020000"); I(f"s_add_u32 s26, s26, {LO:#x}")
    I("s_mov_b32 s27, 0x04040000")
    I("v_mul_lo_u32 v98, v3, s27"); I("v_xor_b32 v99, s27, v98"); I("v_add_u32 v98, s26, v98"); I("v_add_u32 v99, s26, v99")
    I("s_mul_i32 s4, s4, %d" % (512 - 43 * 4096)); I("s_mul_i32 s5, s5, %d" % (512 - 43 * 4096))
    I("s_lshl_b32 s26, s14, 13"); I("s_lshl_b32 s27, s15, 7"); I("s_add_u32 s26, s26, s27"); I(f"s_add_u32 s26, s26, {WS_F}")
    I("s_add_u32 s4, s4, s26"); I("s_add_u32 s5, s5, s26"); I("s_add_u32 s5, s5, 4096"); I("s_sub_u32 s5, s5, s4")
    I("v_mul_lo_u32 v101, v10, s5"); I("v_add_u32 v101, s4, v101")
    I("v_bfe_u32 v36, v0, 3, 2"); I("v_lshl_add_u32 v101, v36, 10, v101"); I("v_lshl_add_u32 v101, v6, 4, v101")
    I("s_lshl_b32 s4, s9, 10")
    I("v_and_b32 v36, 3, v0"); I("v_lshl_add_u32 v103, v36, 4, s4"); I("v_lshl_add_u32 v103, v10, 6, v103")
    I("v_lshl_add_u32 v103, v3, 7, v103"); I("v_bfe_u32 v36, v0, 2, 1"); I("v_lshl_add_u32 v103, v36, 8, v103"); I("v_lshl_add_u32 v103, v11, 9, v103")
    def ftile(acc, first):
        for k in range(4): I(f"v_perm_b32 v{40+k}, v{57+2*k}, v{56+2*k}, v{98+(k>>1)}")
        for k in range(4): I(f"v_sub_f32 v{40+k}, v{40+k}, v{32+(k>>1)}")
        for k in range(2): I(f"v_cvt_pk_bf16_f32 v{36+k}, v{40+2*k}, v{41+2*k}")
        for k in range(2):
            I(f"v_lshlrev_b32 v{40+2*k}, 16, v{36+k}"); I(f"v_and_b32 v{41+2*k}, 0xffff0000, v{36+k}")
        for k in range(4): I(f"v_mul_f32 v{40+k}, v{40+k}, v{34+(k>>1)}")
        for k in range(4): I(f"v_cvt_pk_bf16_f32 v{40+k}, v{40+k}, v{40+k}")
        for k in range(4):
            for d in range(4): I(f"v_and_b32 v{164+4*k+d}, v{40+k}, v{128+d}")
        if first: I("s_waitcnt vmcnt(1)" if False else "s_waitcnt vmcnt(0)")
        for t in range(2):
            for m_ in range(2):
                for b in range(2):
                    B = 164 + 8 * b + 4 * t; D = f"v[{acc+8*m_+4*b}:{acc+8*m_+4*b+3}]"; W = 80 + 8 * m_ + 4 * t
                    I(f"v_mfma_f32_16x16x32_bf16 {D}, v[{W}:{W+3}], v[{B}:{B+3}], {'0' if t == 0 else D}")
        vccm(0xff00ff00, 0x00ff00ff)
        for m_ in range(2):
            for j in range(4): I(f"v_cndmask_b32 v{acc+8*m_+j}, v{acc+8*m_+j}, v{acc+8*m_+4+j}, vcc")
        for j in range(4): I(f"v_permlane32_swap_b32 v{acc+j}, v{acc+8+j}")
        for j in range(4): I(f"v_add_f32_dpp v{acc+j}, v{acc+8+j}, v{acc+j} row_ror:8 row_mask:0xf bank_mask:0xf")
    ftile(180, True)
    only_if("s_cmp_eq_u32 s14, 21", "mx")
    I("v_add_u32 v98, 0x02020000, v98"); I("v_add_u32 v99, 0x02020000, v99")
    ftile(196, False)
    for j in range(4): I(f"v_mov_b32_dpp v{180+j}, v{196+j} quad_perm:[0,1,2,3] row_mask:0xa bank_mask:0xf")
    end_if("mx")
    I(f"ds_write_b128 v103, v[180:183] offset:{L_FP}")
    a.wait_lgkm(0)
    lds_add(12, "v105", "v104", rtn="v107")
    a.wait_lgkm(0)
    I("v_readfirstlane_b32 s4, v107")
    I("s_cmp_lg_u32 s4, 3")
    I("s_cbranch_scc1 L_burst")
    for k in range(4): I(f"ds_read_b128 v[{16+4*k}:{19+4*k}], v106 offset:{L_FP + 1024*k}")
    a.wait_lgkm(0)
    sum4(16)
    for k in range(4): I(f"v_bfi_b32 v{16+k}, 63, {TAG}, v{16+k}")
    if 'F' not in exp: I(f"buffer_store_dwordx4 v[16:19], v101, {WS}, 0 offen sc1", "pubf")
    I("s_nop 1")
    I("s_branch L_burst")
    pro_lines = a.lines; a.lines = main_lines
    a.raw("L_burst:")
    a.skip_end(tpro)
    a.vm = []
    setprio(1)
    def consts_a():
        I(f"s_mul_i32 s96, s10, {WREG}"); I(f"s_add_u32 s96, s96, {L_W}")
        I("s_lshl_b32 s4, s3, 3")
        table(14, [sum(cC[:i]) for i in range(8)]); table(98, list(cC))
        I("s_lshl_b32 s4, s13, 2"); I("s_add_u32 s4, s4, s7")
        I("s_add_u32 s14, s14, s4")
        I("s_cmp_lt_u32 s4, s98"); I("s_cselect_b32 s15, 1, 0"); I("s_cselect_b32 s14, s14, 0")
        I("s_cmp_eq_u32 s10, 1"); I("s_cselect_b32 s79, s15, 0")
        srd(72, 38, 39, None, 0x10000000)
        I("s_lshl_b32 s4, s6, 17"); srd(56, 24, 25, "s4", 131072)
        I("s_lshr_b32 s4, s14, 1"); I("s_lshl_b32 s4, s4, 3"); I("s_and_b32 s5, s14, 1"); I("s_add_u32 s4, s4, s5"); I("s_lshl_b32 s4, s4, 12")
        I("s_mul_i32 s5, s15, 28672"); srd(68, 32, 33, "s4", "s5")
        srd(48, 20, 21, "s100", 262144)
        srd(80, 34, 35, None, 2048)
        I("s_lshr_b32 s4, s12, 1"); I("s_and_b32 s5, s12, 1")
        I("s_lshl_b32 s97, s4, 15"); I("s_lshl_b32 s98, s4, 12"); I("s_lshl_b32 s4, s5, 12"); I("s_or_b32 s97, s97, s4")
        I("s_lshl_b32 s4, s5, 10"); I("s_or_b32 s98, s98, s4")
        I("v_and_b32 v8, 15, v0"); I("v_and_b32 v12, 3, v0"); I("v_and_b32 v15, 31, v0")
        I("v_lshl_add_u32 v2, v8, 4, s78"); I("v_lshl_add_u32 v2, v10, 8, v2"); I("v_lshl_add_u32 v2, v11, 11, v2")
        I("v_lshlrev_b32 v7, 1, v9"); I("v_xor_b32 v7, v6, v7")
        I("s_lshl_b32 s4, s10, 7"); I("v_lshl_add_u32 v7, v7, 4, s4")
        I("v_lshl_add_u32 v4, v9, 13, v7"); I("v_lshl_add_u32 v4, v3, 11, v4")
        I("v_lshl_add_u32 v5, v9, 10, v7"); I("v_lshl_add_u32 v5, v3, 13, v5")
        I("s_lshl_b32 s4, s6, 12"); I("s_lshl_b32 s5, s8, 8"); I("s_add_u32 s4, s4, s5"); I(f"s_add_u32 s4, s4, {WS_Q}")
        I("v_lshl_add_u32 v13, v8, 4, s4"); I("v_lshl_add_u32 v13, v9, 9, v13")
    def gathers():
        only_if("s_cmp_eq_u32 s10, 0", "qg")
        if 'Q' not in exp:
            for l_ in QG_LD: a.raw("  " + l_)
        end_if("qg")
        if fhp is None: fgather()
        nq[0] = len(a.vm)
    def fgather():
        only_if("s_cmp_lg_u32 s79, 0", "fg")
        I("s_lshl_b32 s4, s14, 11"); I("s_lshl_b32 s5, s8, 10"); I("s_add_u32 s4, s4, s5"); I(f"s_add_u32 s4, s4, {WS_F}")
        I("v_lshl_add_u32 v13, v0, 4, s4")
        if 'F' not in exp: a.raw("  " + FG_LD[0])
        end_if("fg")
    nq = [0]; nw = [0]
    for t in range(32):
        if t == G: gathers()
        ldK(t)
        if t == cpos: consts_a()
        if t == kb:
            only_if("s_cmp_lt_u32 s10, 4", "kb"); I("s_barrier")
            if stamps == 2: a.raw(f"  s_memrealtime s[{SREG[2]}:{SREG[2]+1}]")
            end_if("kb")
        if t in wk: ldO(nw[0]); nw[0] += 1
    if G >= 32: gathers()
    nq[0] = len(a.vm) - nq[0]
    setprio(0)
    I("v_mov_b32 v16, 0")
    lds_wait("tg", 16, 0x10000)
    I("s_and_b32 s76, s4, 0xffff")
    I("s_and_b32 s24, s76, 3"); I("s_and_b32 s25, s76, 63")
    I("s_lshl_b32 s99, s11, 2"); I("s_add_u32 s99, s99, s7"); I("s_lshl_b32 s99, s99, 7")
    I("s_lshl_b32 s100, s10, 4"); I("s_add_u32 s99, s99, s100")
    I(f"s_add_u32 s99, s99, {WS_ST}")
    I("s_mov_b32 s16, 0x0f0ff0f0"); I("s_mov_b32 s17, 0x0f0ff0f0")
    I("v_lshl_add_u32 v61, v11, 3, v6"); I("v_lshl_add_u32 v61, v61, 4, 64"); I("v_add_u32 v61, 64, v61")
    I("v_cmp_eq_u32 vcc, v10, v3"); I("v_cndmask_b32 v61, 0, v61, vcc"); I("v_xor_b32 v62, 64, v61")
    I("v_lshlrev_b32 v18, 2, v12"); I("v_lshl_add_u32 v18, v3, 4, v18"); I("v_lshl_add_u32 v18, v11, 5, v18")
    I("v_bfe_u32 v19, v0, 2, 1"); I("v_lshl_add_u32 v18, v19, 6, v18"); I("v_lshl_add_u32 v18, v10, 7, v18")
    I("v_lshlrev_b32 v120, 1, v12"); I("v_lshl_add_u32 v120, v10, 3, v120"); I("v_lshl_add_u32 v120, v11, 4, v120")
    I("v_mul_u32_u24 v14, %d, v6" % OPS); I("v_lshl_add_u32 v14, v9, 4, v14")
    I("v_lshlrev_b32 v6, 3, v6"); I("v_lshl_add_u32 v6, v9, 6, v6")
    I(f"s_mul_i32 s100, s10, {OPS}"); I("v_add_u32 v6, s100, v6")
    I("v_bfe_u32 v3, v0, 2, 2"); I("v_mul_u32_u24 v3, 288, v3")
    I("v_lshl_add_u32 v3, v12, 3, v3"); I("v_lshl_add_u32 v3, v10, 10, v3")
    I("v_lshl_add_u32 v3, v11, 7, v3"); I("v_add_u32 v3, s96, v3")
    I("v_lshlrev_b32 v7, 14, v10"); I("v_lshl_add_u32 v7, v15, 2, v7")
    I("s_lshl_b32 s100, s8, 18"); I("s_lshl_b32 s101, s10, 15"); I("s_add_u32 s100, s100, s101")
    I("s_lshl_b32 s101, s6, 2"); I("s_add_u32 s101, s101, s7"); I("s_lshl_b32 s101, s101, 7"); I("s_add_u32 s100, s100, s101")
    I(f"s_add_u32 s100, s100, {WS_Y}")
    I("v_add_u32 v7, s100, v7")
    I("v_mov_b32 v12, v9")
    masks(8, "v0")
    I("v_mov_b32 v16, 0"); I("v_mov_b32 v19, 1")
    I("v_mov_b32 v63, 0xff")
    I(f"s_mov_b32 s26, {f32(SCALE)}")
    stamp()
    def xchk(r, n, st, mask):
        c = [f"v_xor_b32 v{r+k}, {st}, v{r+k}" for k in range(n)]
        c += [f"v_or3_b32 v20, v{r}, v{r+1}, v{r+2}"]
        if n == 8: c += [f"v_or3_b32 v21, v{r+4}, v{r+5}, v{r+6}", f"v_or3_b32 v20, v20, v21, v{r+7}"]
        c += [f"v_or_b32 v20, v20, v{r+3}", f"v_and_b32 v20, {mask}, v20", "v_cmp_ne_u32 vcc, 0, v20"]
        return c
    only_if("s_cmp_eq_u32 s10, 0", "qw")
    I(f"s_waitcnt vmcnt({nq[0]})")
    if 'Q' not in exp: poll("L_qg", QG_LD, xchk(112, 8, "s24", 3), qsleep)
    for r in range(4): I(f"v_permlane32_swap_b32 v{112+r}, v{116+r}")
    for r in range(4): I(f"v_add_f32 v{112+r}, v{112+r}, v{116+r}")
    I("v_permlane16_swap_b32 v112, v113"); I("v_permlane16_swap_b32 v114, v115")
    I("v_add_f32 v112, v112, v113"); I("v_add_f32 v114, v114, v115")
    I("v_cvt_pk_bf16_f32 v112, v112, v114")
    I(f"ds_write_b32 v18, v112 offset:{L_QS}")
    a.wait_lgkm(0)
    lds_add(8, "v19")
    end_if("qw")
    lds_wait("qs", 8, 1)
    I(f"ds_read_b128 v[40:43], v61 offset:{L_Z}")
    I(f"ds_read_b128 v[44:47], v62 offset:{L_Z}")
    a.wait_lgkm(0)
    def post(GX, part):
        AC = 64 + 16 * (GX & 1); S = f"v{32+GX}"
        if part < 2:
            D = AC + 8 * part; T = S if part == 0 else "v24"
            for j in range(4): I(f"v_cndmask_b32 v{D+j}, v{D+j}, v{D+4+j}, s[16:17]")
            I(f"v_mov_b32_dpp {T}, v{D} quad_perm:[0,0,0,0] row_mask:0xf bank_mask:0xf")
            for c in (1, 2, 3):
                I(f"v_add_f32_dpp {T}, v{D+c}, {T} quad_perm:[{c},{c},{c},{c}] row_mask:0xf bank_mask:0xf")
            return
        I(f"v_permlane16_swap_b32 {S}, v24")
        I(f"v_add_f32_dpp {S}, v24, {S} row_half_mirror row_mask:0xf bank_mask:0xf")
        rne(S, S)
        I(f"v_mul_f32 {S}, s26, {S}")
        rne(S, S)
        if GX == 0: I(f"v_mov_b32 v60, {S}")
        else: I(f"v_max_f32 v60, v60, {S}")
    for GX in range(8):
        for s in range(4):
            t = 4 * GX + s; acc = 64 + 16 * (GX & 1) + 4 * s
            need(f"K{t}")
            I(f"v_mfma_f32_16x16x32_bf16 v[{acc}:{acc+3}], {KB(t)}, v[{40+4*(s&1)}:{43+4*(s&1)}], 0")
            if s == 3: post(GX, 0)
            if s in (0, 1) and GX > 0: post(GX - 1, s + 1)
    post(7, 1); post(7, 2)
    stamp()
    def fh(n):
        only_if("s_cmp_lg_u32 s79, 0", "fh")
        I(f"s_waitcnt vmcnt({n})")
        if 'F' not in exp: poll("L_fg", FG_LD, xchk(112, 4, "s25", 63), qsleep)
        pack_red(112)
        rne("v20", "v112")
        I("v_mov_b32_dpp v21, v20 row_shl:4 row_mask:0xf bank_mask:0xf")
        c1 = -2.0 * 0.7978845608028654 * LOG2E
        I("v_mul_f32 v23, v20, v20")
        I(f"v_mul_f32 v23, {f32(0.044715)}, v23")
        I("v_fma_f32 v23, v23, v20, v20")
        I(f"v_mul_f32 v23, {f32(c1)}, v23")
        I("v_exp_f32 v23, v23")
        I("v_add_f32 v23, 1.0, v23")
        I("v_rcp_f32 v23, v23")
        I("v_mul_f32 v23, v20, v23")
        rne("v23", "v23")
        I("v_mul_f32 v23, v23, v21")
        I("v_cvt_pk_bf16_f32 v23, v23, v23")
        I("v_mov_b32 v20, 0"); I("v_mov_b32 v21, 1")
        I("s_mov_b32 exec_lo, 0x000f000f"); I("s_mov_b32 exec_hi, 0x000f000f")
        I(f"ds_write_b16 v120, v23 offset:{L_H}")
        a.wait_lgkm(0)
        lds_add(4, "v21", "v20")
        end_if("fh")
    if fhp is None: fh(0)
    wave_red("v_max_f32", ["v60"], ["v16"], steps=(8, 4))
    I(f"s_mov_b32 s26, {f32(LOG2E)}")
    for GX in range(8): I(f"v_sub_f32 v{32+GX}, v{32+GX}, v60")
    for GX in range(8): I(f"v_mul_f32 v{32+GX}, s26, v{32+GX}")
    for GX in range(8): I(f"v_exp_f32 v{32+GX}, v{32+GX}")
    I("v_add_f32 v61, v32, v33")
    for GX in range(2, 8): I(f"v_add_f32 v61, v61, v{32+GX}")
    wave_red("v_add_f32", ["v61"], ["v16"], steps=(8, 4))
    I(f"v_or_b32 v60, {TAG}, v60")
    I(f"v_bfi_b32 v61, v63, {TAG}, v61")
    I(f"v_mov_b32 v62, {TAG}"); I(f"v_mov_b32 v63, {TAG}")
    I("v_mov_b32 v16, s99")
    I("s_mov_b64 exec, 1")
    if 'S' not in exp: I(f"buffer_store_dwordx4 v[60:63], v16, {WS}, 0 offen sc1", "pubst")
    I("s_mov_b64 exec, -1")
    setprio(2)
    def midblock(KB0=16):
        need("O15"); need("D1")
        T = KB0
        for j in range(1, 4): I(f"v_xor_b32 v{27+j}, {32*j}, v3")
        AD = ["v3", "v28", "v29", "v30"]
        for j in range(4): I(f"v_mov_b32 v{40+4*j}, 0")
        only_if("s_cmp_lg_u32 s15, 0", "wd")
        I(f"v_mov_b32 v{T}, 0")
        lds_wait("hw", 4, 1, f"v{T+1}", f"v{T}")
        I(f"v_lshlrev_b32 v{T}, 3, v12")
        I(f"ds_read_b64 v[{T+8}:{T+9}], v{T} offset:{L_H}")
        for j in range(4):
            I(f"ds_read_b64_tr_b16 v[{T+2*j}:{T+1+2*j}], {AD[j]} offset:16384")
        I("s_mov_b32 vcc_lo, 0x01010101"); I("s_mov_b32 vcc_hi, 0x01010101")
        a.wait_lgkm(0)
        I(f"v_cndmask_b32 v{T+8}, 0, v{T+8}, vcc"); I(f"v_cndmask_b32 v{T+9}, 0, v{T+9}, vcc")
        for j in range(4):
            I(f"v_mfma_f32_16x16x16_bf16 v[{40+4*j}:{43+4*j}], v[{T+8}:{T+9}], v[{T+2*j}:{T+1+2*j}], 0")
        end_if("wd")
        for j in range(4):
            for ks in range(4):
                for e in range(2):
                    r = 64 + 16 * j + 4 * ks + 2 * e
                    I(f"ds_read_b64_tr_b16 v[{r}:{r+1}], {AD[j]} offset:{4096*ks + 2048*e}")
    if cmap == 'all':
        I("s_and_b32 s4, s2, 0xe0"); I("s_cmp_eq_u32 s4, 0xe0"); I("s_cselect_b32 s13, 1, 0")
        I("s_lshl_b32 s4, s3, 2"); I("s_add_u32 s12, s7, s4")
    else:
        I("s_and_b32 s4, s2, 0xc1"); I(f"s_cmp_eq_u32 s4, {0xc0 | (cmap == 'odd')}"); I("s_cselect_b32 s13, 1, 0")
        I("s_lshr_b32 s4, s3, 1"); I("s_lshl_b32 s4, s4, 3"); I("s_add_u32 s12, s12, s4")
    I("s_lshl_b32 s100, s12, 14"); I("s_lshl_b32 s101, s10, 11"); I("s_add_u32 s100, s100, s101")
    I(f"s_add_u32 s100, s100, {WS_Y}")
    I("v_lshl_add_u32 v31, v0, 4, s100")
    if touch:
        only_if("s_cmp_lg_u32 s13, 0", "tc")
        I(f"s_mov_b32 m0, {L_QP}"); I("s_nop 0")
        for k in range(2): a.raw(f"  buffer_load_dwordx4 v31, {WS}, 0 offen offset:{1024*k} sc1 lds")
        end_if("tc")
    if fhp is not None: fgather()
    nf = len(a.vm)
    for t in range(32):
        ldV(t)
        if t == fhp: fh(len(a.vm) - nf)
        if t in dv: ldD(dv.index(t))
        if t in wv and nw[0] < 16:
            ldO(nw[0]); nw[0] += 1
    assert nw[0] == 16
    I("s_lshl_b32 s98, s12, 6")
    I("v_lshlrev_b32 v15, 1, v15")
    I(f"buffer_load_ushort v13, v15, {X}, s98 offen", "xo")
    I("v_lshlrev_b32 v1, 3, v15")
    I(f"s_lshl_b32 s100, s11, 9"); I(f"s_add_u32 s100, s100, {WS_ST}"); I("v_add_u32 v1, s100, v1")
    only_if("s_cmp_eq_u32 s10, 0", "hl")
    if ot: a.raw(f"  buffer_load_ushort v60, v15, {OUT}, s98 offen")
    if 'S' not in exp: a.raw("  " + ST_LD[0])
    end_if("hl")
    for GX in range(8): I(f"v_cvt_pk_bf16_f32 v{32+GX}, v{32+GX}, v{32+GX}")
    I("v_and_b32 v4, 1, v12"); I("v_lshlrev_b32 v4, 4, v4")
    I("v_mov_b32 v63, 0xff")
    def buildB(dst, src, n):
        for d in range(4):
            I(f"v_and_b32_dpp v{dst+d}, {src}, v{8+d} row_newbcast:{n} row_mask:0xf bank_mask:0xf")
    buildB(16, "v32", 0)
    for t in range(32):
        cur = 16 + 4 * (t & 1); nxt = 16 + 4 * ((t + 1) & 1)
        if t + 1 < 32: buildB(nxt, f"v{32 + ((t+1) >> 2)}", 4 * ((t + 1) & 3))
        need(f"V{t}")
        I(f"v_mfma_f32_16x16x32_bf16 v[24:27], {KB(t)}, v[{cur}:{cur+3}], {'0' if t == 0 else 'v[24:27]'}")
        if t == 0: stamp(True)
        if t == pm: midblock(KB0=128)
    I("v_and_b32 v9, 7, v0"); I("v_lshlrev_b32 v9, 7, v9"); I("v_lshl_add_u32 v9, v4, 2, v9")
    I("v_lshrrev_b32 v10, 5, v0"); I("v_lshl_add_u32 v9, v10, 5, v9"); I("s_lshl_b32 s100, s10, 2"); I("v_add_u32 v9, s100, v9")
    I("v_cvt_pk_bf16_f32 v24, v24, v25"); I("v_cvt_pk_bf16_f32 v25, v26, v27")
    I(f"ds_write_b64 v6, v[24:25] offset:{L_OP}")
    stamp()
    I("v_lshlrev_b32 v10, 4, v10"); I("v_lshl_add_u32 v10, v15, 4, v10")
    only_if("s_cmp_eq_u32 s10, 0", "fin")
    I("s_waitcnt vmcnt(0)")
    if 'S' not in exp: poll("L_st", ST_LD, tagchk("v28", "v29", ["v56", "v57", "v58", "v59"], 0xff), hsleep)
    I("v_and_b32 v56, 0xffff0000, v56")
    I("v_and_b32 v57, 0xffffff00, v57")
    I("v_mov_b32 v58, v56")
    wave_red("v_max_f32", ["v58"], ["v59"], swaps=("v_permlane16_swap_b32",))
    I("v_sub_f32 v56, v56, v58"); I("v_mul_f32 v56, s26, v56"); I("v_exp_f32 v56, v56")
    I("v_mul_f32 v59, v56, v57")
    wave_red("v_add_f32", ["v59"], ["v57"], swaps=("v_permlane16_swap_b32",))
    I("v_rcp_f32 v57, v59")
    I("v_mul_f32 v61, v56, v57")
    I("v_fma_f32 v58, -v61, v59, v56"); I("v_fmac_f32 v61, v58, v57")
    I("v_and_b32 v58, 7, v0"); I("v_lshlrev_b32 v58, 2, v58")
    I("s_lshl_b32 s100, s7, 3"); I("s_lshl_b32 s100, 0xff, s100")
    I("s_mov_b32 exec_lo, s100"); I("s_mov_b32 exec_hi, 0")
    I(f"ds_write_b32 v58, v61 offset:{L_SC}")
    I("s_mov_b64 exec, -1")
    end_if("fin")
    a.wait_lgkm(0)
    I("s_barrier")
    stamp(True)
    for ks in range(4):
        I(f"ds_read_b128 v[{144+4*ks}:{147+4*ks}], v14 offset:{L_OP + 64*ks}")
    I(f"ds_read_b128 v[56:59], v4 offset:{L_SC}")
    def red(j):
        I(f"v_fma_f32 v{16+j}, v56, v{128+4*j}, v{40+4*j}")
        for r in range(1, 4): I(f"v_fmac_f32 v{16+j}, v{56+r}, v{128+4*j+r}")
    for j in range(4):
        for ks in range(4):
            if j == 0: a.wait_lgkm(4 - ks)
            acc = f"v[{128+4*j}:{131+4*j}]"
            b_ = 64 + 16 * j + 4 * ks
            I(f"v_mfma_f32_16x16x32_bf16 {acc}, v[{144+4*ks}:{147+4*ks}], v[{b_}:{b_+3}], {'0' if ks == 0 else acc}")
            if j == 1 and ks == 0: a.wait_lgkm(0)
            if j >= 1 and ks == 2: red(j - 1)
            if j == 3 and ks == 0:
                I("v_permlane16_swap_b32 v16, v17"); I("v_add_f32 v16, v16, v17")
    red(3)
    I("v_permlane16_swap_b32 v18, v19")
    I("v_add_f32_dpp v16, v18, v19 quad_perm:[0,1,2,3] row_mask:0xc bank_mask:0xf")
    I(f"v_bfi_b32 v16, v63, {TAG}, v16")
    I(f"buffer_store_dword v16, v7, {WS}, 0 offen sc1", "puby")
    stamp()
    EXIT = "L_stamps" if stamps == 2 else "L_end"
    I("s_cmp_eq_u32 s13, 0")
    I(f"s_cbranch_scc1 {'L_stamps' if stamps else 'L_end'}")
    I("s_mov_b32 s101, 0")
    I("s_and_b32 s5, s76, 0xff")
    a.vm = []
    def yld(k):
        for e in range(2):
            a.raw(f"  buffer_load_dwordx4 v[{160+8*k+4*e}:{163+8*k+4*e}], v31, {WS}, 0 offen offset:{1024*e} sc1")
    if p0: a.raw(f"  s_sleep {p0}")
    for k in range(NS):
        yld(k)
        if k < NS - 1 and psl: a.raw(f"  s_sleep {psl}")
    a.raw("L_y_poll:")
    for k in range(NS):
        r = 160 + 8 * k
        a.raw(f"  s_waitcnt vmcnt({2*(NS-1)})")
        if stamps == 2 and k == 0:
            a.raw("  s_cmp_lg_u32 s101, 0"); a.raw("  s_cbranch_scc1 L_nst"); a.raw(f"  s_memrealtime s[{SREG[1]}:{SREG[1]+1}]"); a.raw("L_nst:")
        for j in range(8):
            a.raw(f"  v_xor_b32 v{r+j}, s5, v{r+j}")
        a.raw(f"  v_or3_b32 v32, v{r}, v{r+1}, v{r+2}")
        a.raw(f"  v_or3_b32 v33, v{r+3}, v{r+4}, v{r+5}")
        a.raw(f"  v_or3_b32 v32, v32, v{r+6}, v{r+7}")
        a.raw("  v_bitop3_b32 v32, v32, v33, v63 bitop3:0xa8")
        a.raw("  v_cmp_ne_u32 vcc, 0, v32")
        for j in range(4):
            a.raw(f"  v_add_f32 v{16+j}, v{r+j}, v{r+4+j}")
        a.raw("  s_add_u32 s101, s101, 1")
        a.raw("  s_cbranch_vccz L_y_ok")
        a.raw("  s_mov_b64 exec, vcc")
        if poll_sleep: a.raw(f"  s_sleep {poll_sleep}")
        yld(k)
    a.raw("  s_cmp_lt_u32 s101, 0x8000")
    a.raw("  s_cbranch_scc1 L_y_poll")
    a.raw("L_y_ok:")
    a.raw("  s_mov_b64 exec, -1")
    if stamps == 2:
        a.raw(f"  s_memrealtime s[{SREG[2]}:{SREG[2]+1}]")
        a.raw("  s_mul_i32 s4, s101, 100"); a.raw(f"  s_add_u32 s{SREG[3]}, s{SREG[0]}, s4"); a.raw(f"  s_addc_u32 s{SREG[3]+1}, s{SREG[0]+1}, 0")
    pack_red(16)
    I(f"ds_write_b32 v9, v16 offset:{L_Y}")
    a.wait_lgkm(0)
    I("s_barrier")
    I("s_cmp_lg_u32 s10, 0")
    I("s_cbranch_scc1 L_ep")
    I(f"ds_read_b128 v[16:19], v10 offset:{L_Y}")
    I("v_lshlrev_b32 v13, 16, v13")
    a.wait_lgkm(0)
    I("v_add_f32 v16, v16, v17"); I("v_add_f32 v18, v18, v19"); I("v_add_f32 v16, v16, v18")
    I("v_mov_b32 v17, v16"); I("v_permlane32_swap_b32 v16, v17"); I("v_add_f32 v16, v16, v17")
    I("v_add_f32 v16, v16, v13")
    I("v_cvt_pk_bf16_f32 v16, v16, v16")
    I("s_mov_b32 exec_hi, 0")
    I(f"buffer_store_short v16, v15, {OUT}, s98 offen")
    I(f"s_branch {'L_stamps' if stamps else 'L_end'}")
    a.raw("L_ep:")
    I("s_lshl_b32 s4, s12, 3"); I("s_add_u32 s4, s4, s10")
    I("s_cmp_lg_u32 s4, 1")
    I(f"s_cbranch_scc1 {EXIT}")
    I(f"v_mov_b32 v21, {TAG}")
    I("s_mov_b64 exec, 1")
    I(f"s_mov_b32 s100, {WS_EP}")
    I(f"buffer_store_dword v21, off, {WS}, s100 sc1")
    if stamps == 1: I("s_branch L_end")
    if stamps:
        a.raw("L_stamps:")
        a.wait_vm_all()
        while nstamp[0] < (12 if stamps == 2 else 6): stamp()
        a.wait_lgkm(0)
        I("s_mov_b64 exec, 1")
        n = nstamp[0]
        if stamps == 2:
            I("s_lshl_b32 s2, s2, 3"); I("s_add_u32 s2, s2, s10")
        else:
            I("s_cmp_lg_u32 s10, 0"); I("s_cbranch_scc1 L_end")
        I(f"s_mul_i32 s100, s2, {8*n}"); I(f"s_add_u32 s100, s100, {WS_STAMP}"); I("v_mov_b32 v18, s100")
        for k in range(n):
            I(f"v_mov_b32 v16, s{SREG[k]}"); I(f"v_mov_b32 v17, s{SREG[k]+1}")
            I(f"buffer_store_dwordx2 v[16:17], v18, {WS}, 0 offen offset:{8*k}")
            I("s_nop 1")
    a.raw("L_end:")
    if NS > 1: a.raw("  s_waitcnt vmcnt(0)")
    I("s_endpgm")
    a.lines += pro_lines
    body = a.text()
    desc = lambda name, nv, ns: f""".amdhsa_kernel {name}
  .amdhsa_next_free_vgpr {nv}
  .amdhsa_next_free_sgpr {ns}
  .amdhsa_accum_offset {nv}
  .amdhsa_group_segment_fixed_size 0
  .amdhsa_kernarg_size 96
  .amdhsa_user_sgpr_count 2
  .amdhsa_user_sgpr_kernarg_segment_ptr 1
  .amdhsa_system_sgpr_workgroup_id_x 1
  .amdhsa_float_denorm_mode_32 3
.end_amdhsa_kernel
"""
    out = HEADER
    out += f"; @launch grid=(256,1,1) block=(512,1,1) lds={LDS_BYTES}\n"
    out += f'.amdgcn_target "amdgcn-amd-amdhsa--gfx950"\n.text\n.globl {NAME}_kernel\n.p2align 8\n.type {NAME}_kernel,@function\n'
    out += body
    out += '.section .rodata,"a"\n.p2align 6\n' + desc(NAME + "_kernel", 256, 102)
    sys.stderr.write(f"maxvm {a.maxvm} nops {a.nops} lines {len(a.lines)}\n")
    return out

if __name__ == "__main__":
    import ast
    fn = sys.argv[1]
    kw = {}
    for x in sys.argv[2:]:
        k, v = x.split("=", 1)
        try: kw[k] = ast.literal_eval(v)
        except Exception: kw[k] = v
    open(fn, "w").write(gen(**kw))
```
